```python
import torch

def _softmax(x, axis=-1):
    return torch.softmax(x, dim=axis)
def _gelu(x):
    return torch.nn.functional.gelu(x, approximate="tanh")
def _silu(x):
    return torch.nn.functional.silu(x)
def _sigmoid(x):
    return torch.sigmoid(x)
def _layernorm(x, axis=-1, eps=1e-5):
    m = x.mean(dim=axis, keepdim=True)
    v = x.var(dim=axis, keepdim=True, unbiased=False)
    return (x - m) / torch.sqrt(v + eps)
def _scatter_add(tgt, idx, src, axis=0):
    return tgt.clone().index_add_(axis, idx, src)
def _segment_sum(src, seg, n):
    out = torch.zeros((n,) + src.shape[1:], dtype=src.dtype)
    return out.index_add_(0, seg, src)
def _pad(x, pw):
    flat = tuple(v for pair in reversed(pw) for v in pair)
    return torch.nn.functional.pad(x, flat)

kernel_name = 'standalone__gqa_softmax__near_ridge'

def setup_inputs():

    _w = (lambda a: (lambda t: t.to(torch.bfloat16) if t.is_floating_point() else t)(torch.as_tensor(a)))
    B, Hq, Hkv, Sq, Sk, D = 16, 32, 8, 256, 256, 128
    return {
        "q": _w((lambda *s: torch.randn(*s, dtype=torch.bfloat16) * 0.8)(B, Hq, Sq, D)),
        "k": _w((lambda *s: torch.randn(*s, dtype=torch.bfloat16) * 0.8)(B, Hkv, Sk, D)),
        "v": _w((lambda *s: torch.randn(*s, dtype=torch.bfloat16) * 0.05)(B, Hkv, Sk, D)),
    }

def reference(q, k, v):
    B, Hq, Sq, D = q.shape
    Hkv = k.shape[1]
    rep = Hq // Hkv
    k = (lambda x, n, axis: torch.repeat_interleave(x, n, dim=axis))(k, rep, axis=1)
    v = (lambda x, n, axis: torch.repeat_interleave(x, n, dim=axis))(v, rep, axis=1)
    scale = D ** -0.5
    scores = torch.einsum("bhqd,bhkd->bhqk", q, k) * scale
    p = _softmax(scores, axis=-1)
    return torch.einsum("bhqk,bhkd->bhqd", p, v)
```

```python
import sys
NAME = "standalone__gqa_softmax__near_ridge"
L = []
def e(s): L.append("    " + s)
def lab(s): L.append(s + ":")
def cm(s): L.append("    ; " + s)

LDS_K = 0
LDS_V = 65536
LDS_BYTES = 131072

sQ, sK, sV, sO = 8, 12, 16, 20
sWave = 24
sQoff = 25
sKVoff = 26
sTmp = 27
sC = 28
sTile = 29
sM = 30
vLane = 1
vQoff = 2
vKaddr = 4
vVaddr = 12
vT0, vT1, vT2, vT3 = 16, 17, 18, 19
vM, vM2, vL, vL2 = 20, 21, 22, 23
vSum = 24
vFrag = 32
vQ0 = 64
vQ1 = 96
vS = 128
vP = 128
vO = 192

def hdr():
    return f"""; Kernarg layout for this problem (48 bytes, ptrs only, base s[0:1]):
; @launch grid=(256,1,1) block=(512,1,1) lds={LDS_BYTES}
.amdgcn_target "amdgcn-amd-amdhsa--gfx950"
.text
.globl {NAME}_kernel
.p2align 8
.type {NAME}_kernel,@function
{NAME}_kernel:
"""
def ftr(nv=256):
    return f"""
.section .rodata,"a"
.p2align 6
.amdhsa_kernel {NAME}_kernel
  .amdhsa_next_free_vgpr {nv}
  .amdhsa_next_free_sgpr 102
  .amdhsa_accum_offset {nv}
  .amdhsa_group_segment_fixed_size 0
  .amdhsa_kernarg_size 48
  .amdhsa_user_sgpr_count 2
  .amdhsa_user_sgpr_kernarg_segment_ptr 1
  .amdhsa_system_sgpr_workgroup_id_x 1
.end_amdhsa_kernel
"""

def r4(b): return f"v[{b}:{b+3}]"
def r2(b): return f"v[{b}:{b+1}]"
def r16(b): return f"v[{b}:{b+15}]"

def prologue():
    e("s_cmp_ge_u32 s2, 256")
    e("s_cbranch_scc1 L_end")
    e("s_load_dwordx4 s[4:7], s[0:1], 0")
    e("s_load_dwordx4 s[32:35], s[0:1], 16")
    e(f"v_lshrrev_b32 v{vT0}, 6, v0")
    e(f"v_and_b32 v{vLane}, 63, v0")
    e(f"v_readfirstlane_b32 s{sWave}, v{vT0}")
    e("s_lshr_b32 s36, s2, 4")
    e("s_lshl_b32 s36, s36, 3")
    e("s_and_b32 s37, s2, 7")
    e("s_add_u32 s36, s36, s37")
    e("s_lshr_b32 s37, s2, 3")
    e("s_and_b32 s37, s37, 1")
    e(f"s_lshl_b32 s{sKVoff}, s36, 16")
    e("s_lshl_b32 s38, s36, 18")
    e("s_lshl_b32 s37, s37, 17")
    e("s_add_u32 s38, s38, s37")
    e(f"s_lshl_b32 s39, s{sWave}, 13")
    e(f"s_add_u32 s{sQoff}, s38, s39")
    e(f"v_and_b32 v{vT0}, 31, v{vLane}")
    e(f"v_lshrrev_b32 v{vT1}, 5, v{vLane}")
    e(f"v_lshlrev_b32 v{vQoff}, 8, v{vT0}")
    e(f"v_lshl_add_u32 v{vQoff}, v{vT1}, 4, v{vQoff}")
    e(f"v_lshrrev_b32 v{vT2}, 4, v{vLane}")
    e(f"v_and_b32 v{vT3}, 15, v{vLane}")
    e(f"s_and_b32 s40, s{sWave}, 3")
    e("s_lshl_b32 s40, s40, 2")
    e(f"v_add_u32 v28, s40, v{vT2}")
    e(f"v_xor_b32 v28, v28, v{vT3}")
    e(f"v_lshlrev_b32 v28, 4, v28")
    e(f"v_lshl_add_u32 v28, v{vT2}, 8, v28")
    e(f"v_lshlrev_b32 v29, 2, v{vT2}")
    e(f"v_xor_b32 v29, v29, v{vT3}")
    e(f"v_lshlrev_b32 v29, 4, v29")
    e(f"v_lshl_add_u32 v29, v{vT2}, 8, v29")
    e("s_waitcnt lgkmcnt(0)")
    for (srd, lo, n) in ((sQ,4,0x2000000),(sK,6,0x800000),(sV,32,0x800000),(sO,34,0x2000000)):
        e(f"s_mov_b32 s{srd}, s{lo}")
        e(f"s_mov_b32 s{srd+1}, s{lo+1}")
        e(f"s_mov_b32 s{srd+2}, {hex(n)}")
        e(f"s_mov_b32 s{srd+3}, 0x00020000")
    for s in range(8):
        e(f"buffer_load_dwordx4 {r4(vQ0+4*s)}, v{vQoff}, s[{sQ}:{sQ+3}], s{sQoff} offen offset:{32*s}")
    e(f"s_lshl_b32 s41, s{sWave}, 10")
    e(f"s_add_u32 s42, s{sKVoff}, s41")
    for i in range(8):
        e(f"s_add_u32 m0, s41, {LDS_K + i*8192}")
        e(f"s_add_u32 s43, s42, {i*8192}")
        e(f"buffer_load_dwordx4 v28, s[{sK}:{sK+3}], s43 offen lds")
    for i in range(8):
        e(f"s_add_u32 m0, s41, {LDS_V + i*8192}")
        e(f"s_add_u32 s43, s42, {i*8192}")
        e(f"buffer_load_dwordx4 v29, s[{sV}:{sV+3}], s43 offen lds")
    e(f"s_add_u32 s44, s{sQoff}, 65536")
    for s in range(8):
        e(f"buffer_load_dwordx4 {r4(vQ1+4*s)}, v{vQoff}, s[{sQ}:{sQ+3}], s44 offen offset:{32*s}")
    e(f"v_and_b32 v{vT2}, 15, v{vLane}")
    e(f"v_xor_b32 v{vT2}, v{vT2}, v{vT1}")
    e(f"v_lshlrev_b32 v{vT2}, 4, v{vT2}")
    e(f"v_lshl_add_u32 v{vT2}, v{vT0}, 8, v{vT2}")
    for s in range(8):
        e(f"v_xor_b32 v{vKaddr+s}, {32*s}, v{vT2}")
    e(f"v_lshrrev_b32 v{vT2}, 2, v{vLane}")
    e(f"v_and_b32 v{vT2}, 3, v{vT2}")
    e(f"v_lshl_add_u32 v{vT3}, v{vT1}, 2, v{vT2}")
    e(f"v_lshlrev_b32 v{vT3}, 8, v{vT3}")
    e(f"v_lshl_add_u32 v{vT3}, v{vT2}, 6, v{vT3}")
    e(f"v_lshrrev_b32 v{vT2}, 4, v{vLane}")
    e(f"v_and_b32 v{vT2}, 1, v{vT2}")
    e(f"v_lshl_add_u32 v{vT3}, v{vT2}, 5, v{vT3}")
    e(f"v_and_b32 v{vT2}, 1, v{vLane}")
    e(f"v_lshl_add_u32 v{vT3}, v{vT2}, 4, v{vT3}")
    e(f"v_lshrrev_b32 v{vT2}, 1, v{vLane}")
    e(f"v_and_b32 v{vT2}, 1, v{vT2}")
    e(f"v_lshl_add_u32 v{vT3}, v{vT2}, 3, v{vT3}")
    e(f"v_add_u32 v{vT3}, {LDS_V}, v{vT3}")
    for t in range(4):
        e(f"v_xor_b32 v{vVaddr+t}, {64*t}, v{vT3}")
    import struct, math
    c = math.log2(math.e) / math.sqrt(128.0)
    e(f"s_mov_b32 s{sC}, {hex(struct.unpack('<I', struct.pack('<f', c))[0])}")

def qk_phase(vQ):
    RING = 8
    def rd(n):
        j, s = divmod(n, 8)
        e(f"ds_read_b128 {r4(vFrag + 4*(n%RING))}, v{vKaddr+s} offset:{8192*j}")
    for n in range(RING):
        rd(n)
    for n in range(64):
        j, s = divmod(n, 8)
        outstanding_after = min(63, n + RING - 1) - n
        e(f"s_waitcnt lgkmcnt({outstanding_after})")
        c = "0" if s == 0 else r16(vS+16*j)
        e(f"v_mfma_f32_32x32x16_bf16 {r16(vS+16*j)}, {r4(vFrag+4*(n%RING))}, {r4(vQ+4*s)}, {c}")
        if n + RING < 64:
            rd(n + RING)
        if j >= 1 and s >= 4:
            b = vS + 16*(j-1) + 4*(s-4)
            if j == 1 and s == 4:
                e(f"v_max_f32 v{vM}, v{b}, v{b+1}")
                e(f"v_max_f32 v{vM2}, v{b+2}, v{b+3}")
            else:
                e(f"v_max3_f32 v{vM}, v{b}, v{b+1}, v{vM}")
                e(f"v_max3_f32 v{vM2}, v{b+2}, v{b+3}, v{vM2}")
    e("s_nop 11")
    b = vS + 16*7
    for i in range(4):
        e(f"v_max3_f32 v{vM}, v{b+4*i}, v{b+4*i+1}, v{vM}")
        e(f"v_max3_f32 v{vM2}, v{b+4*i+2}, v{b+4*i+3}, v{vM2}")
    e(f"v_max_f32 v{vM}, v{vM}, v{vM2}")
    e(f"v_mov_b32 v{vM2}, v{vM}")
    e("s_nop 1")
    e(f"v_permlane32_swap_b32 v{vM}, v{vM2}")
    e("s_nop 1")
    e(f"v_max_f32 v{vM}, v{vM}, v{vM2}")
    e(f"v_mul_f32 v{vM}, s{sC}, v{vM}")

def softmax_phase():
    for g in range(32):
        b = vS + 4*g
        for i in range(4):
            e(f"v_fma_f32 v{b+i}, v{b+i}, s{sC}, -v{vM}")
        for i in range(4):
            e(f"v_exp_f32 v{b+i}, v{b+i}")
        if g >= 1:
            pb = vS + 4*(g-1)
            for i in range(4):
                if g == 1:
                    e(f"v_mov_b32 v{vSum+i}, v{pb+i}")
                else:
                    e(f"v_add_f32 v{vSum+i}, v{vSum+i}, v{pb+i}")
            e(f"v_cvt_pk_bf16_f32 v{vP+2*(g-1)}, v{pb}, v{pb+1}")
            e(f"v_cvt_pk_bf16_f32 v{vP+2*(g-1)+1}, v{pb+2}, v{pb+3}")
    e("s_nop 0")
    pb = vS + 4*31
    for i in range(4):
        e(f"v_add_f32 v{vSum+i}, v{vSum+i}, v{pb+i}")
    e(f"v_cvt_pk_bf16_f32 v{vP+62}, v{pb}, v{pb+1}")
    e(f"v_cvt_pk_bf16_f32 v{vP+63}, v{pb+2}, v{pb+3}")
    e(f"v_add_f32 v{vSum}, v{vSum}, v{vSum+1}")
    e(f"v_add_f32 v{vSum+2}, v{vSum+2}, v{vSum+3}")
    e(f"v_add_f32 v{vL}, v{vSum}, v{vSum+2}")
    e(f"v_mov_b32 v{vL2}, v{vL}")
    e("s_nop 1")
    e(f"v_permlane32_swap_b32 v{vL}, v{vL2}")
    e("s_nop 1")
    e(f"v_add_f32 v{vL}, v{vL}, v{vL2}")
    e(f"v_rcp_f32 v{vL}, v{vL}")

def pv_phase():
    RING = 7
    def rd(n):
        u, t = divmod(n, 4)
        b = vFrag + 4*(n%RING)
        e(f"ds_read_b64_tr_b16 {r2(b)}, v{vVaddr+t} offset:{4096*u}")
        e(f"ds_read_b64_tr_b16 {r2(b+2)}, v{vVaddr+t} offset:{4096*u+2048}")
    for n in range(RING):
        rd(n)
    for n in range(64):
        u, t = divmod(n, 4)
        outstanding_after = (min(63, n + RING - 1) - n) * 2
        e(f"s_waitcnt lgkmcnt({outstanding_after})")
        c = "0" if u == 0 else r16(vO+16*t)
        e(f"v_mfma_f32_32x32x16_bf16 {r16(vO+16*t)}, {r4(vFrag+4*(n%RING))}, {r4(vP+4*u)}, {c}")
        if n + RING < 64:
            rd(n + RING)

def epilogue(soff):
    e("s_nop 8")
    for t in range(4):
        if t == 3:
            e("s_nop 3")
        for x in range(2):
            b = vO + 16*t + 8*x
            for i in range(8):
                e(f"v_mul_f32 v{b+i}, v{b+i}, v{vL}")
            d = vP + 8*t + 4*x
            for i in range(4):
                e(f"v_cvt_pk_bf16_f32 v{d+i}, v{b+2*i}, v{b+2*i+1}")
            e(f"buffer_store_dwordx4 {r4(d)}, v{vQoff}, s[{sO}:{sO+3}], s{soff} offen offset:{64*t+32*x}")

def main():
    prologue()
    e("s_waitcnt vmcnt(16)")
    e("s_barrier")
    qk_phase(vQ0)
    softmax_phase()
    e("s_waitcnt vmcnt(8)")
    e("s_barrier")
    pv_phase()
    epilogue(sQoff)
    e("s_waitcnt vmcnt(8)")
    e("s_nop 1")
    qk_phase(vQ1)
    softmax_phase()
    pv_phase()
    epilogue(44)
    lab("L_end")
    e("s_endpgm")
    out = hdr() + "\n".join(L) + "\n" + ftr()
    path = sys.argv[1] if len(sys.argv) > 1 else f"cdna_kernels/{NAME}.s"
    open(path, "w").write(out)
    print("wrote", path, len(L), "lines")
main()
```

```python
import re
class Ins:
    __slots__ = ("text","kind","rd","wr","cread","states","sw","sr")
    def __init__(s, text, kind, rd=(), wr=(), cread=(), states=1, sw=(), sr=()):
        s.text=text; s.kind=kind; s.rd=set(rd); s.wr=set(wr); s.cread=set(cread); s.states=states
        s.sw=set(sw); s.sr=set(sr)

def R(b, n=1): return list(range(b, b+n))
def vr(b, n):
    return f"v{b}" if n == 1 else f"v[{b}:{b+n-1}]"

class Asm:
    def __init__(s):
        s.L = []
        s.lg = 0
        s.lgdone = 0
    def add(s, ins): s.L.append(ins); return ins
    def label(s, name): s.add(Ins(name + ":", "label", states=0))
    def comment(s, t): s.add(Ins("; " + t, "comment", states=0))
    def salu(s, t, sw=(), sr=()): s.add(Ins(t, "salu", sw=sw, sr=sr))
    def m0(s, t): s.add(Ins(t, "salu", sw=["m0"]))
    def nop(s, n): s.add(Ins(f"s_nop {n}", "nop", states=n+1))
    def raw(s, t, kind="salu"): s.add(Ins(t, kind))
    def branch(s, t): s.add(Ins(t, "branch"))
    def valu(s, t, wr=(), rd=(), sw=(), sr=()): s.add(Ins(t, "valu", rd=rd, wr=wr, sw=sw, sr=sr))
    def trans(s, t, wr=(), rd=()): s.add(Ins(t, "trans", rd=rd, wr=wr))
    def perm(s, a, b, op="v_permlane32_swap_b32"): s.add(Ins(f"{op} v{a}, v{b}", "perm", rd=[a,b], wr=[a,b]))
    def rfl(s, sd, v): s.add(Ins(f"v_readfirstlane_b32 s{sd}, v{v}", "rfl", rd=[v], sw=[sd]))
    def mfma(s, d, a, b, c):
        cs = "0" if c is None else vr(c,16)
        s.add(Ins(f"v_mfma_f32_32x32x16_bf16 {vr(d,16)}, {vr(a,4)}, {vr(b,4)}, {cs}", "mfma",
                  rd=R(a,4)+R(b,4), wr=R(d,16), cread=([] if c is None else R(c,16))))
    def ds(s, t, wr=(), rd=()):
        s.add(Ins(t, "ds", rd=rd, wr=wr)); s.lg += 1; return s.lg - 1
    def vload(s, t, wr=(), rd=(), sr=(), lds=False):
        s.add(Ins(t, "vdma" if lds else "vload", rd=rd, wr=wr, sr=sr))
    def vstore(s, t, data, rd=(), sr=()):
        s.add(Ins(t, "vstore", rd=list(rd)+list(data), cread=data, sr=sr))
    def wait_lg(s, opid):
        if opid < s.lgdone: return
        n = min(15, s.lg - 1 - opid)
        s.add(Ins(f"s_waitcnt lgkmcnt({n})", "wait"))
        s.lgdone = s.lg - n
    def wait_lg_all(s):
        s.add(Ins("s_waitcnt lgkmcnt(0)", "wait")); s.lgdone = s.lg
    def wait_vm(s, n): s.add(Ins(f"s_waitcnt vmcnt({n})", "wait"))
    def barrier(s): s.add(Ins("s_barrier", "salu"))
    def text(s):
        out = []
        for i in s.L:
            out.append(i.text if i.kind == "label" else "    " + i.text)
        return "\n".join(out) + "\n"

VALUK = ("valu","trans","perm","rfl")
def check(L, name=""):
    errs = 0
    n = len(L)
    for i, a in enumerate(L):
        if a.states == 0: continue
        dist = 0
        lastm = -1 if a.kind == "mfma" else None
        for k in range(i+1, min(n, i+40)):
            b = L[k]
            if b.states == 0: continue
            if b.kind == "mfma":
                if lastm is not None: dist = max(dist, lastm + 7)
                lastm = dist
            need = 0; why = ""
            if a.kind == "mfma":
                if b.kind in VALUK and (a.wr & (b.rd | b.wr)): need, why = 12, "mfmaD->valu"
                if b.kind in ("ds","vload","vstore","vdma") and (a.wr & (b.rd | b.wr)): need, why = 12, "mfmaD->mem"
                if b.kind == "mfma":
                    if a.wr & b.rd: need, why = 12, "mfmaD->AB"
                    elif (a.wr & b.cread) and a.wr != b.cread: need, why = 10, "mfmaD->C partial"
                if b.kind in VALUK and (a.cread & b.wr): need, why = max(need,7), why+"mfmaC WAR"
            if a.kind in VALUK:
                if b.kind == "mfma" and (a.wr & (b.rd | b.cread)): need, why = 2, "valu->mfma"
                if b.kind == "perm" and (a.wr & b.rd): need, why = 2, "valu->perm"
                if b.kind == "rfl" and (a.wr & b.rd): need, why = 1, "valu->rfl"
                if a.kind == "trans" and b.kind in ("valu","perm","rfl") and (a.wr & b.rd): need, why = max(need,1), "trans->valu"
                if a.sw and b.kind in ("vload","vstore","vdma") and (a.sw & b.sr): need, why = 5, "valu sgpr->vmem"
                if a.sw and b.kind in VALUK and (a.sw & b.sr): need, why = 2, "valu sgpr->valu"
            if a.kind == "vstore":
                if b.kind in VALUK and (a.cread & b.wr): need, why = 2, "store WAR"
                elif (a.cread & b.wr): need, why = 1, "store WAR"
            if a.kind == "salu" and "m0" in a.sw and b.kind == "vdma": need, why = 1, "m0->dma"
            if dist < need:
                print(f"HAZARD[{name}] {why}: need {need} have {dist}\n   {a.text}\n   {b.text}")
                errs += 1
            dist += b.states
            if dist >= 12: break
    return errs
```

```python
import sys, struct, math
from asmlib import *
NAME = "standalone__gqa_softmax__near_ridge"
P = dict(stamp=0, la=8, la_a0=6, nb=28, vstart=-1, vstep=1, q1b=40, q1step=2, st="sc1", p1=1, p2=0, pgap=78,
         mapping="contig", limit=32, wstep=2, depth=3, qlin=0)
outpath = f"cdna_kernels/{NAME}.s"
for a in sys.argv[1:]:
    if "=" in a:
        k, v = a.split("=")
        assert k in P, k
        P[k] = type(P[k])(v)
    else:
        outpath = a

LDS_K, LDS_V, LDS_ST, LDS_BYTES = 0, 65536, 131072, 163840
sQ, sK, sV, sO = 8, 12, 16, 20
sWave, sQoff, sKVoff, sT, sC, sLim, sOo, sOo2, sQoff1 = 24, 25, 26, 27, 28, 29, 30, 31, 44
sFb = 45
vLane, vQoff, vOst = 1, 2, 3
vKaddr, vVaddr, vWaddr, vRaddr = 4, 12, 16, 20
vM, vT, vL, vS0, vS1 = 21, 22, 23, 24, 25
vD = 26
vT2, vT3 = 30, 31
vFW, vFR = 30, 31
vFrag, vQ0, vQ1, vP, vSB, vX = 32, 64, 96, 128, 192, 240

A = Asm()
def sb(i): return vSB + 16*(i % 3)

NST = [0]
SNAMES = []
def stamp(name):
    if not P["stamp"]: return
    if name in SNAMES: i = SNAMES.index(name)
    else:
        SNAMES.append(name); i = len(SNAMES)-1
    A.raw(f"s_memtime s[{60+2*i}:{61+2*i}]")

def srd(d, lo, n):
    A.salu(f"s_mov_b32 s{d}, s{lo}"); A.salu(f"s_mov_b32 s{d+1}, s{lo+1}")
    A.salu(f"s_mov_b32 s{d+2}, {hex(n)}"); A.salu(f"s_mov_b32 s{d+3}, 0x00020000")

QCNT = [0]
def qload(base, soff, s):
    QCNT[0] += 1
    if (P["qlin"] == 1 and QCNT[0] <= 8) or P["qlin"] == 2:
        A.vload(f"buffer_load_dwordx4 {vr(base+4*s,4)}, v{253+s//4}, s[{sQ}:{sQ+3}], s{soff} offen offset:{1024*(s%4)}", wr=R(base+4*s,4), rd=[vQoff])
        return
    A.vload(f"buffer_load_dwordx4 {vr(base+4*s,4)}, v{vQoff}, s[{sQ}:{sQ+3}], s{soff} offen offset:{32*s}", wr=R(base+4*s,4), rd=[vQoff])

def V(t, wr, rd=(), **k): A.valu(t, wr=[wr] if isinstance(wr,int) else wr, rd=rd, **k)

def common_addrs():
    V(f"v_and_b32 v{vT2}, 31, v{vLane}", vT2, [vLane])
    V(f"v_lshrrev_b32 v{vT3}, 5, v{vLane}", vT3, [vLane])
    V(f"v_and_b32 v{vT}, 15, v{vLane}", vT)
    V(f"v_xor_b32 v{vT}, v{vT}, v{vT3}", vT)
    V(f"v_lshlrev_b32 v{vT}, 4, v{vT}", vT)
    V(f"v_lshl_add_u32 v{vT}, v{vT2}, 8, v{vT}", vT)
    for s in range(8):
        V(f"v_xor_b32 v{vKaddr+s}, {32*s}, v{vT}", vKaddr+s)
    V(f"v_bfe_u32 v{vT}, v{vLane}, 2, 2", vT)
    V(f"v_lshl_add_u32 v{vL}, v{vT3}, 2, v{vT}", vL)
    V(f"v_lshlrev_b32 v{vL}, 8, v{vL}", vL)
    V(f"v_lshl_add_u32 v{vL}, v{vT}, 6, v{vL}", vL)
    V(f"v_bfe_u32 v{vT}, v{vLane}, 4, 1", vT)
    V(f"v_lshl_add_u32 v{vL}, v{vT}, 5, v{vL}", vL)
    V(f"v_and_b32 v{vT}, 1, v{vLane}", vT)
    V(f"v_lshl_add_u32 v{vL}, v{vT}, 4, v{vL}", vL)
    V(f"v_bfe_u32 v{vT}, v{vLane}, 1, 1", vT)
    V(f"v_lshl_add_u32 v{vL}, v{vT}, 3, v{vL}", vL)
    V(f"v_add_u32 v{vL}, {LDS_V}, v{vL}", vL)
    for t in range(4):
        V(f"v_xor_b32 v{vVaddr+t}, {64*t}, v{vL}", vVaddr+t)
    A.salu(f"s_lshl_b32 s{sT}, s{sWave}, 12")
    A.salu(f"s_add_u32 s{sT}, s{sT}, {LDS_ST}")
    V(f"v_and_b32 v{vT}, 7, v{vLane}", vT)
    V(f"v_xor_b32 v{vT}, v{vT}, v{vT3}", vT)
    V(f"v_lshlrev_b32 v{vT}, 4, v{vT}", vT)
    V(f"v_lshl_add_u32 v{vT}, v{vT2}, 7, v{vT}", vT)
    V(f"v_add_u32 v{vT}, s{sT}, v{vT}", vT)
    for i in range(4):
        V(f"v_xor_b32 v{vWaddr+i}, {32*i}, v{vT}", vWaddr+i)
    V(f"v_lshrrev_b32 v{vT2}, 3, v{vLane}", vT2)
    V(f"v_and_b32 v{vT3}, 7, v{vLane}", vT3)
    V(f"v_xor_b32 v{vT}, v{vT2}, v{vT3}", vT)
    V(f"v_lshlrev_b32 v{vT}, 4, v{vT}", vT)
    V(f"v_lshl_add_u32 v{vT}, v{vT2}, 7, v{vT}", vT)
    V(f"v_add_u32 v{vRaddr}, s{sT}, v{vT}", vRaddr)
    V(f"v_lshlrev_b32 v{vOst}, 4, v{vT3}", vOst)
    V(f"v_lshl_add_u32 v{vOst}, v{vT2}, 8, v{vOst}", vOst)
    A.salu(f"s_lshl_b32 s40, s{sWave}, 2")
    A.salu(f"s_add_u32 s40, s40, {LDS_ST}")
    V(f"v_lshlrev_b32 v{vFW}, 12, v{vT3}", vFW)
    V(f"v_add_u32 v{vFW}, s40, v{vFW}", vFW)
    V(f"v_mov_b32 v{vFR}, s{sT}", vFR)
    c = math.log2(math.e) / math.sqrt(128.0)
    A.salu(f"s_mov_b32 s{sC}, {hex(struct.unpack('<I', struct.pack('<f', c))[0])}")
    A.salu(f"s_mov_b32 s{sLim}, {hex((127+P['limit'])<<23)}")
    A.salu(f"s_mov_b32 s{sOo}, s{sQoff}")
    A.salu(f"s_add_u32 s{sOo2}, s{sQoff}, 4096")

SLOW = []
def flag_set(val):
    V(f"v_mov_b32 v{vX+8}, {val}", vX+8)
    A.ds(f"ds_write_b32 v{vFW}, v{vX+8}", rd=[vFW, vX+8])
def flag_read(allw):
    i = A.ds(f"ds_read_b128 {vr(vX,4)}, v{vFR} offset:16", wr=R(vX,4), rd=[vFR])
    if allw: i = A.ds(f"ds_read_b128 {vr(vX+4,4)}, v{vFR}", wr=R(vX+4,4), rd=[vFR])
    return i
def flag_cmp(val, allw):
    V(f"v_min3_u32 v{vX}, v{vX}, v{vX+1}, v{vX+2}", vX, R(vX,3))
    if allw:
        V(f"v_min3_u32 v{vX+4}, v{vX+4}, v{vX+5}, v{vX+6}", vX+4, R(vX+4,3))
        V(f"v_min3_u32 v{vX}, v{vX}, v{vX+4}, v{vX+7}", vX, [vX, vX+4, vX+7])
    V(f"v_min_u32 v{vX}, v{vX}, v{vX+3}", vX, [vX, vX+3])
    V(f"v_cmp_gt_u32 s[46:47], {val}, v{vX}", [], [vX], sw=[46])
    A.salu("s_cmp_lg_u64 s[46:47], 0")
def flag_check(opid, val, allw):
    n = len(SLOW); SLOW.append((val, allw))
    A.wait_lg(opid)
    flag_cmp(val, allw)
    A.branch(f"s_cbranch_scc1 L_slow{n}")
    A.label(f"L_back{n}")
def slow_paths():
    for n, (val, allw) in enumerate(SLOW):
        A.label(f"L_slow{n}")
        flag_read(allw)
        A.wait_lg_all()
        flag_cmp(val, allw)
        A.branch(f"s_cbranch_scc1 L_slow{n}")
        A.branch(f"s_branch L_back{n}")

def tile(mode, vQ, fb_label):
    LA = P["la_a0"] if mode == "a0" else P["la"]
    split = (mode == "a0")
    fill = {g: [] for g in range(0, 160)}
    pre_read = {}
    G0 = 11
    b0 = sb(0)
    def mx():
        V(f"v_max3_f32 v{vM}, v{b0}, v{b0+1}, v{b0+2}", vM, R(b0,3))
        V(f"v_max3_f32 v{vT}, v{b0+3}, v{b0+4}, v{b0+5}", vT, R(b0+3,3))
        for i in range(5):
            d = vM if i % 2 == 0 else vT
            V(f"v_max3_f32 v{d}, v{d}, v{b0+6+2*i}, v{b0+7+2*i}", d, [d, b0+6+2*i, b0+7+2*i])
        V(f"v_max_f32 v{vL}, v{vM}, v{vT}", vL, [vM, vT])
        V(f"v_max_f32 v{vM}, v{vM}, v{vT}", vM, [vM, vT])
    fill[9].append(mx)
    def mx2():
        A.perm(vM, vL)
        V(f"v_max_f32 v{vM}, v{vM}, v{vL}", vM, [vM, vL])
        V(f"v_mul_f32 v{vM}, s{sC}, v{vM}", vM, [vM])
    fill[10].append(mx2)
    def reg(p, k): return sb(p // 8) + 2*(p % 8) + k
    for g in range(G0, G0 + 66):
        pf, pe, pa = g - G0, g - G0 - 1, g - G0 - 2
        def f(pf=pf, pe=pe, pa=pa):
            for k in range(2):
                if 0 <= pe < 64:
                    r = reg(pe, k); A.trans(f"v_exp_f32 v{r}, v{r}", [r], [r])
                if 0 <= pf < 64:
                    r = reg(pf, k); V(f"v_fma_f32 v{r}, v{r}, s{sC}, -v{vM}", r, [r, vM])
            if 0 <= pa < 64:
                a, b = reg(pa, 0), reg(pa, 1)
                if pa == 0: V(f"v_add_f32 v{vS0}, v{a}, v{b}", vS0, [a, b])
                elif pa == 1: V(f"v_add_f32 v{vS1}, v{a}, v{b}", vS1, [a, b])
                else:
                    V(f"v_add_f32 v{vS0}, v{vS0}, v{a}", vS0, [vS0, a])
                    V(f"v_add_f32 v{vS1}, v{vS1}, v{b}", vS1, [vS1, b])
                V(f"v_cvt_pk_bf16_f32 v{vP+pa}, v{a}, v{b}", vP+pa, [a, b])
        fill[g].append(f)
    gl = G0 + 66
    def l1():
        V(f"v_add_f32 v{vL}, v{vS0}, v{vS1}", vL, [vS0, vS1])
        V(f"v_add_f32 v{vT}, v{vS0}, v{vS1}", vT, [vS0, vS1])
        if split: A.nop(1)
    def l2():
        A.perm(vL, vT)
        V(f"v_add_f32 v{vL}, v{vL}, v{vT}", vL, [vL, vT])
    def l3():
        V(f"v_cmp_ngt_f32 vcc, s{sLim}, v{vL}", [], [vL], sw=["vcc"])
        A.trans(f"v_rcp_f32 v{vL}, v{vL}", [vL], [vL])
    def l4():
        A.branch(f"s_cbranch_vccnz {fb_label}")
    fill[gl].append(l1); fill[gl+1].append(l2); fill[gl+2].append(l3)
    if not split: fill[gl+3].append(l4)
    obuf = [sb(2), sb(0), sb(1), sb(2)]
    rd_ids = {}
    for t in range(4):
        E = 64 + 16*(t+1) + 1
        o = obuf[t]
        for i in range(9):
            def f(i=i, o=o):
                if i < 8:
                    V(f"v_mul_f32 v{o+2*i}, v{vL}, v{o+2*i}", o+2*i, [o+2*i, vL])
                    V(f"v_mul_f32 v{o+2*i+1}, v{vL}, v{o+2*i+1}", o+2*i+1, [o+2*i+1, vL])
                if i >= 1:
                    k = i-1
                    V(f"v_cvt_pk_bf16_f32 v{o+k}, v{o+2*k}, v{o+2*k+1}", o+k, [o+2*k, o+2*k+1])
            fill[E+i].append(f)
        for x in range(2):
            def w(x=x, o=o, t=t):
                A.ds(f"ds_write_b128 v{vWaddr+2*(t%2)+x}, {vr(o+4*x,4)}", rd=[vWaddr+2*(t%2)+x]+R(o+4*x,4))
            fill[E+4+4*x].append(w)
        if t % 2 == 1:
            for r in range(4):
                def rdb(r=r, t=t):
                    rd_ids[(t,r)] = A.ds(f"ds_read_b128 {vr(vX+4*r,4)}, v{vRaddr} offset:{1024*r}", wr=R(vX+4*r,4), rd=[vRaddr])
                fill[E+9+r//2].append(rdb)
                def st(r=r, t=t):
                    A.wait_lg(rd_ids[(t,r)])
                    so = sOo if r < 2 else sOo2
                    A.vstore(f"buffer_store_dwordx4 {vr(vX+4*r,4)}, v{vOst}, s[{sO}:{sO+3}], s{so} offen offset:{128*(t//2)+2048*(r%2)} {P['st']}".rstrip(), R(vX+4*r,4), rd=[vOst])
                fill[E+13+r//2*1].append(st)
    fid = {}
    def vdma(i):
        if i % 4 == 0:
            A.m0(f"s_add_u32 m0, s41, {LDS_V + 32768 + (i//4)*4096}")
            A.salu(f"s_add_u32 s43, s42, {32768 + (i//4)*4096}")
        A.vload(f"buffer_load_dwordx4 v{vD}, s[{sV}:{sV+3}], s43 offen offset:{1024*(i%4)} lds", rd=[vD], lds=True)
    if not split: fill[P["pgap"]].append(lambda: A.raw(f"s_setprio {P['p2']}"))
    if mode == "a0":
        for g in (1, 2, 3):
            f0 = 16*g
            fill[f0 - LA - 3].append(lambda g=g: fid.__setitem__(g, flag_read(False)))
            pre_read[f0] = lambda g=g: (stamp(f"k{g}a"), flag_check(fid[g], g+1, False), stamp(f"k{g}b"))
        if P["vstart"] >= 0:
            for i in range(8):
                fill[P["vstart"] + i*P["vstep"]].append(lambda i=i: vdma(i))
    if mode == "b0":
        assert P["q1b"] > P["nb"]
        fill[P["nb"]].append(lambda: (stamp("k1a"), A.wait_vm(0), flag_set(5), stamp("k1b")))
        for s in range(8):
            fill[P["q1b"] + s*P["q1step"]].append(lambda s=s: qload(vQ1, sQoff1, s))
        fill[64 - LA - 3].append(lambda: fid.__setitem__(9, flag_read(True)))
        pre_read[64] = lambda: (stamp("bar3a"), flag_check(fid[9], 5, True), stamp("bar3b"))
    rid = {}
    def rd(f):
        if f in pre_read: pre_read[f]()
        b = vFrag + 4*(f % 8)
        if f < 64:
            j, s = divmod(f, 8)
            rid[f] = A.ds(f"ds_read_b128 {vr(b,4)}, v{vKaddr+s} offset:{8192*j}", wr=R(b,4), rd=[vKaddr+s])
        else:
            t, u = divmod(f-64, 16)
            A.ds(f"ds_read_b64_tr_b16 {vr(b,2)}, v{vVaddr+t} offset:{4096*u}", wr=R(b,2), rd=[vVaddr+t])
            rid[f] = A.ds(f"ds_read_b64_tr_b16 {vr(b+2,2)}, v{vVaddr+t} offset:{4096*u+2048}", wr=R(b+2,2), rd=[vVaddr+t])
    for f in range(LA): rd(f)
    W = P["wstep"]
    for n in range(128):
        if split and n == 64:
            for g in range(64, gl+3):
                for f in fill[g]: f()
                fill[g] = []
            stamp("ph1end")
            A.raw(f"s_setprio {P['p2']}")
            if P["vstart"] < 0:
                for i in range(8): vdma(i)
            for s in range(8): qload(vQ1, sQoff1, s)
            stamp("q0b")
            A.wait_vm(8)
            flag_set(5)
            stamp("bar3a")
            flag_check(flag_read(True), 5, True)
            stamp("bar3b")
            l4()
            LA = P["la"]
            for f in range(64, 64+LA): rd(f)
        if n == 64 and not split: stamp("ph1end" if mode != "t1" else "ph1end1")
        if n % W == 0:
            A.wait_lg(rid[min(n + W - 1, 127)])
        b = vFrag + 4*(n % 8)
        if n < 64:
            j, s = divmod(n, 8)
            A.mfma(sb(j), b, vQ + 4*s, None if s == 0 else sb(j))
        else:
            t, u = divmod(n-64, 16)
            A.mfma(obuf[t], b, vP + 4*u, None if u == 0 else obuf[t])
        f = n + LA
        if f < 128 and not (split and n < 64 and f >= 64): rd(f)
        for fn in fill[n]: fn()
    stamp("ph2end" if mode != "t1" else "ph2end1")
    for fn in fill[128]: fn()
    A.nop(11)
    for g in range(129, 160):
        for fn in fill[g]: fn()

def fallback():
    vS = 128; vO = 192; vM2 = vT; vL2 = vT; vSum = 26
    A.wait_lg_all()
    A.nop(15)
    rid = {}
    def rdk(n):
        j, s = divmod(n, 8)
        b = vFrag + 4*(n % 8)
        rid[n] = A.ds(f"ds_read_b128 {vr(b,4)}, v{vKaddr+s} offset:{8192*j}", wr=R(b,4), rd=[vKaddr+s])
    for n in range(8): rdk(n)
    for n in range(64):
        j, s = divmod(n, 8)
        A.wait_lg(rid[n])
        A.mfma(vS+16*j, vFrag+4*(n%8), vQ0+4*s, None if s == 0 else vS+16*j)
        if n + 8 < 64: rdk(n+8)
    A.nop(12)
    V(f"v_max_f32 v{vM}, v{vS}, v{vS+1}", vM, [vS, vS+1])
    for i in range(1, 64):
        V(f"v_max3_f32 v{vM}, v{vM}, v{vS+2*i}, v{vS+2*i+1}", vM, [vM, vS+2*i, vS+2*i+1])
    V(f"v_mov_b32 v{vM2}, v{vM}", vM2, [vM])
    A.nop(1)
    A.perm(vM, vM2)
    V(f"v_max_f32 v{vM}, v{vM}, v{vM2}", vM, [vM, vM2])
    V(f"v_mul_f32 v{vM}, s{sC}, v{vM}", vM, [vM])
    V(f"v_mov_b32 v{vSum}, 0", vSum)
    for p in range(64):
        a, b = vS+2*p, vS+2*p+1
        V(f"v_fma_f32 v{a}, v{a}, s{sC}, -v{vM}", a, [a, vM])
        V(f"v_fma_f32 v{b}, v{b}, s{sC}, -v{vM}", b, [b, vM])
        A.trans(f"v_exp_f32 v{a}, v{a}", [a], [a])
        A.trans(f"v_exp_f32 v{b}, v{b}", [b], [b])
        V(f"v_add_f32 v{vSum}, v{vSum}, v{a}", vSum, [vSum, a])
        V(f"v_add_f32 v{vSum}, v{vSum}, v{b}", vSum, [vSum, b])
        V(f"v_cvt_pk_bf16_f32 v{vP+p}, v{a}, v{b}", vP+p, [a, b])
    V(f"v_mov_b32 v{vL}, v{vSum}", vL, [vSum])
    A.nop(1)
    A.perm(vL, vSum)
    V(f"v_add_f32 v{vL}, v{vL}, v{vSum}", vL, [vL, vSum])
    A.trans(f"v_rcp_f32 v{vL}, v{vL}", [vL], [vL])
    rid = {}
    def rdv(n):
        u, t = divmod(n, 4)
        b = vFrag + 4*(n % 8)
        A.ds(f"ds_read_b64_tr_b16 {vr(b,2)}, v{vVaddr+t} offset:{4096*u}", wr=R(b,2), rd=[vVaddr+t])
        rid[n] = A.ds(f"ds_read_b64_tr_b16 {vr(b+2,2)}, v{vVaddr+t} offset:{4096*u+2048}", wr=R(b+2,2), rd=[vVaddr+t])
    for n in range(7): rdv(n)
    for n in range(64):
        u, t = divmod(n, 4)
        A.wait_lg(rid[n])
        A.mfma(vO+16*t, vFrag+4*(n%8), vP+4*u, None if u == 0 else vO+16*t)
        if n + 7 < 64: rdv(n+7)
    A.nop(12)
    for t in range(4):
        for x in range(2):
            b = vO + 16*t + 8*x
            for i in range(8):
                V(f"v_mul_f32 v{b+i}, v{b+i}, v{vL}", b+i, [b+i, vL])
            d = vP + 8*t + 4*x
            for i in range(4):
                V(f"v_cvt_pk_bf16_f32 v{d+i}, v{b+2*i}, v{b+2*i+1}", d+i, [b+2*i, b+2*i+1])
            A.vstore(f"buffer_store_dwordx4 {vr(d,4)}, v{vQoff}, s[{sO}:{sO+3}], s{sOo} offen offset:{64*t+32*x}", R(d,4), rd=[vQoff])
    A.nop(2)

def stamp_dump():
    if not P["stamp"]: return
    A.wait_vm(0)
    stamp("end")
    A.raw("s_memrealtime s[58:59]")
    A.raw("s_load_dwordx2 s[46:47], s[0:1], 40")
    A.raw("s_waitcnt lgkmcnt(0)")
    A.raw("s_mov_b32 s48, s46"); A.raw("s_mov_b32 s49, s47"); A.raw("s_mov_b32 s50, 0x1000000"); A.raw("s_mov_b32 s51, 0x00020000")
    A.raw(f"s_lshl_b32 s52, s2, 3"); A.raw(f"s_add_u32 s52, s52, s{sWave}"); A.raw("s_lshl_b32 s52, s52, 7")
    A.raw("s_getreg_b32 s53, hwreg(HW_REG_XCC_ID)")
    A.raw("s_getreg_b32 s54, hwreg(HW_REG_HW_ID)")
    vals = [56, 58, 53, 54] + [60+2*i for i in range(len(SNAMES))]
    A.raw("v_mov_b32 v3, 0")
    for n, sreg in enumerate(vals):
        A.raw(f"v_mov_b32 v16, s{sreg}")
        A.raw(f"buffer_store_dword v16, v3, s[48:51], s52 offen offset:{4*n}")
    A.raw("s_waitcnt vmcnt(0)")

def main():
    if P["stamp"]:
        A.raw("s_memrealtime s[56:57]")
        stamp("start")
    A.salu("s_cmp_ge_u32 s2, 256")
    A.branch("s_cbranch_scc1 L_end")
    A.raw("s_load_dwordx4 s[4:7], s[0:1], 0")
    A.raw("s_load_dwordx4 s[32:35], s[0:1], 16")
    V(f"v_lshrrev_b32 v{vT}, 6, v0", vT)
    V(f"v_and_b32 v{vLane}, 63, v0", vLane)
    A.rfl(sWave, vT)
    if P["mapping"] == "contig":
        A.salu("s_and_b32 s36, s2, 7"); A.salu("s_lshl_b32 s36, s36, 4"); A.salu("s_lshr_b32 s37, s2, 4"); A.salu("s_add_u32 s36, s36, s37")
    else:
        A.salu("s_lshr_b32 s36, s2, 4"); A.salu("s_lshl_b32 s36, s36, 3"); A.salu("s_and_b32 s37, s2, 7"); A.salu("s_add_u32 s36, s36, s37")
    A.salu("s_bfe_u32 s37, s2, 0x10003")
    A.salu(f"s_lshl_b32 s{sKVoff}, s36, 16")
    A.salu("s_lshl_b32 s38, s36, 18")
    A.salu("s_lshl_b32 s37, s37, 17")
    A.salu("s_add_u32 s38, s38, s37")
    A.salu(f"s_lshl_b32 s39, s{sWave}, 13")
    A.salu(f"s_add_u32 s{sQoff}, s38, s39")
    A.salu(f"s_add_u32 s{sQoff1}, s{sQoff}, 65536")
    V(f"v_and_b32 v{vT2}, 31, v{vLane}", vT2)
    V(f"v_lshrrev_b32 v{vT3}, 5, v{vLane}", vT3)
    V(f"v_lshlrev_b32 v{vQoff}, 8, v{vT2}", vQoff)
    V(f"v_lshl_add_u32 v{vQoff}, v{vT3}, 4, v{vQoff}", vQoff)
    V(f"v_lshrrev_b32 v{vT2}, 4, v{vLane}", vT2)
    V(f"v_and_b32 v{vT3}, 15, v{vLane}", vT3)
    if P["qlin"]:
        V(f"v_lshlrev_b32 v253, 4, v{vLane}", 253)
        V(f"v_add_u32 v254, 4096, v253", 254)
    A.salu(f"s_cmp_ge_u32 s{sWave}, 4")
    A.branch("s_cbranch_scc1 L_b")
    A.raw("s_waitcnt lgkmcnt(0)")
    srd(sQ, 4, 0x2000000)
    for s in range(8): qload(vQ0, sQoff, s)
    srd(sK, 6, 0x800000); srd(sV, 32, 0x800000); srd(sO, 34, 0x2000000)
    V(f"v_lshlrev_b32 v{vD}, 2, v{vT2}", vD)
    V(f"v_xor_b32 v{vD}, v{vD}, v{vT3}", vD)
    V(f"v_lshlrev_b32 v{vD}, 4, v{vD}", vD)
    V(f"v_lshl_add_u32 v{vD}, v{vT2}, 8, v{vD}", vD)
    A.salu(f"s_mov_b32 s41, s39")
    A.salu(f"s_add_u32 s42, s{sKVoff}, s41")
    common_addrs()
    flag_set(0)
    A.salu(f"s_mov_b32 s{sFb}, 0")
    A.raw(f"s_setprio {P['p1']}")
    A.wait_lg_all()
    stamp("issued")
    A.barrier()
    stamp("bar1a")
    A.wait_vm(0)
    stamp("bar1b")
    tile("a0", vQ0, "L_fb0")
    A.branch("s_branch L_t1")
    A.label("L_b")
    V(f"v_xor_b32 v{vD}, v{vT2}, v{vT3}", vD)
    V(f"v_lshlrev_b32 v{vD}, 4, v{vD}", vD)
    V(f"v_lshl_add_u32 v{vD}, v{vT2}, 8, v{vD}", vD)
    for i in range(1, 4):
        V(f"v_xor_b32 v{vD+i}, {64*i}, v{vD}", vD+i)
    V(f"v_lshlrev_b32 v{vX+12}, 2, v{vT2}", vX+12)
    V(f"v_xor_b32 v{vX+12}, v{vX+12}, v{vT3}", vX+12)
    V(f"v_lshlrev_b32 v{vX+12}, 4, v{vX+12}", vX+12)
    V(f"v_lshl_add_u32 v{vX+12}, v{vT2}, 8, v{vX+12}", vX+12)
    A.salu(f"s_lshl_b32 s41, s{sWave}, 12")
    A.salu(f"s_sub_u32 s41, s41, {4*4096}")
    A.salu(f"s_add_u32 s42, s{sKVoff}, s41")
    A.raw("s_waitcnt lgkmcnt(0)")
    srd(sK, 6, 0x800000)
    def unit(u):
        if u < 4:
            A.m0(f"s_add_u32 m0, s41, {LDS_K + u*16384}")
            A.salu(f"s_add_u32 s43, s42, {u*16384}")
            for i in range(4):
                A.vload(f"buffer_load_dwordx4 v{vD+i}, s[{sK}:{sK+3}], s43 offen offset:{1024*i} lds", rd=[vD+i], lds=True)
        elif u < 6:
            for s in range(4): qload(vQ0, sQoff, 4*(u-4)+s)
        else:
            A.m0(f"s_add_u32 m0, s41, {LDS_V + (u-6)*16384}")
            A.salu(f"s_add_u32 s43, s42, {(u-6)*16384}")
            for i in range(4):
                A.vload(f"buffer_load_dwordx4 v{vX+12}, s[{sV}:{sV+3}], s43 offen offset:{1024*i} lds", rd=[vX+12], lds=True)
    D = P["depth"]
    unit(0)
    srd(sQ, 4, 0x2000000); srd(sV, 32, 0x800000); srd(sO, 34, 0x2000000)
    unit(1)
    common_addrs()
    flag_set(0)
    A.salu(f"s_mov_b32 s{sFb}, 0")
    for u in range(2, D): unit(u)
    nxt = D
    A.wait_lg_all()
    stamp("issued")
    A.wait_vm(4*(nxt-1))
    stamp("bar1a")
    A.barrier()
    stamp("bar1b")
    for g in (1, 2, 3):
        if nxt < 8: unit(nxt); nxt += 1
        A.wait_vm(4*(nxt-1-g))
        flag_set(g+1)
        if g >= 2: stamp(f"k{g}a")
    while nxt < 8: unit(nxt); nxt += 1
    stamp("k3b")
    fr = flag_read(False)
    A.wait_vm(8)
    flag_check(fr, 4, False)
    A.raw(f"s_setprio {P['p1']}")
    stamp("q0b")
    tile("b0", vQ0, "L_fb0")
    A.label("L_t1")
    stamp("t0end")
    A.salu(f"s_mov_b32 s{sOo}, s{sQoff1}")
    A.salu(f"s_add_u32 s{sOo2}, s{sQoff1}, 4096")
    A.raw(f"s_setprio {P['p1']}")
    A.wait_vm(8)
    stamp("q1")
    tile("t1", vQ1, "L_fb1")
    A.label("L_done")
    stamp("t1end")
    stamp_dump()
    A.label("L_end")
    A.raw("s_endpgm")
    slow_paths()
    A.label("L_fb1")
    A.salu(f"s_mov_b32 s{sFb}, 1")
    for i in range(32): V(f"v_mov_b32 v{vQ0+i}, v{vQ1+i}", vQ0+i, [vQ1+i])
    A.label("L_fb0")
    fallback()
    A.salu(f"s_cmp_eq_u32 s{sFb}, 0")
    A.branch("s_cbranch_scc1 L_t1")
    A.branch("s_branch L_done")
    errs = check(A.L, "v2")
    hdr = f"""; Kernarg layout for this problem (48 bytes, ptrs only, base s[0:1]):
;   offset   0: d_in[0] q  shape=(16, 32, 256, 128) dtype=bfloat16
;   offset   8: d_in[1] k  shape=(16, 8, 256, 128) dtype=bfloat16
;   offset  16: d_in[2] v  shape=(16, 8, 256, 128) dtype=bfloat16
;   offset  24: d_out     shape=(16, 32, 256, 128) dtype=bfloat16 (2 bytes/elem)
; @launch grid=(256,1,1) block=(512,1,1) lds={LDS_BYTES}
.amdgcn_target "amdgcn-amd-amdhsa--gfx950"
.text
.globl {NAME}_kernel
.p2align 8
.type {NAME}_kernel,@function
{NAME}_kernel:
"""
    ftr = f"""
.section .rodata,"a"
.p2align 6
.amdhsa_kernel {NAME}_kernel
  .amdhsa_next_free_vgpr 256
  .amdhsa_next_free_sgpr 102
  .amdhsa_accum_offset 256
  .amdhsa_group_segment_fixed_size 0
  .amdhsa_kernarg_size 48
  .amdhsa_user_sgpr_count 2
  .amdhsa_user_sgpr_kernarg_segment_ptr 1
  .amdhsa_system_sgpr_workgroup_id_x 1
.end_amdhsa_kernel
"""
    open(outpath, "w").write(hdr + A.text() + ftr)
    print("wrote", outpath, len(A.L), "lines; hazards:", errs, "stamps:", SNAMES)
main()
```

```python
import sys, struct, math
from asmlib import *
NAME = "standalone__gqa_softmax__near_ridge"
P = dict(stamp=0, la=8, la_a0=6, nb=28, vstart=-1, vstep=1, q1b=40, q1step=2, st="sc1", p1=1, p2=0, pgap=78,
         mapping="contig", limit=32, wstep=2, depth=3)
outpath = f"cdna_kernels/{NAME}.s"
for a in sys.argv[1:]:
    if "=" in a:
        k, v = a.split("=")
        assert k in P, k
        P[k] = type(P[k])(v)
    else:
        outpath = a

LDS_K, LDS_V, LDS_ST, LDS_BYTES = 0, 65536, 131072, 163840
sQ, sK, sV, sO = 8, 12, 16, 20
sWave, sQoff, sKVoff, sT, sC, sLim, sOo, sOo2, sQoff1 = 24, 25, 26, 27, 28, 29, 30, 31, 44
sFb = 45
vLane, vQoff, vOst = 1, 2, 3
vKaddr, vVaddr, vWaddr, vRaddr = 4, 12, 16, 20
vM, vT, vL, vS0, vS1 = 21, 22, 23, 24, 25
vD = 26
vT2, vT3 = 30, 31
vFW, vFR = 30, 31
vFrag, vQ0, vQ1, vP, vSB, vX = 32, 64, 96, 128, 192, 240

A = Asm()
def sb(i): return vSB + 16*(i % 3)

NST = [0]
SNAMES = []
def stamp(name):
    if not P["stamp"]: return
    if name in SNAMES: i = SNAMES.index(name)
    else:
        SNAMES.append(name); i = len(SNAMES)-1
    A.raw(f"s_memtime s[{60+2*i}:{61+2*i}]")

def srd(d, lo, n):
    A.salu(f"s_mov_b32 s{d}, s{lo}"); A.salu(f"s_mov_b32 s{d+1}, s{lo+1}")
    A.salu(f"s_mov_b32 s{d+2}, {hex(n)}"); A.salu(f"s_mov_b32 s{d+3}, 0x00020000")

def qload(base, soff, s):
    A.vload(f"buffer_load_dwordx4 {vr(base+4*s,4)}, v{vQoff}, s[{sQ}:{sQ+3}], s{soff} offen offset:{32*s}", wr=R(base+4*s,4), rd=[vQoff])

def V(t, wr, rd=(), **k): A.valu(t, wr=[wr] if isinstance(wr,int) else wr, rd=rd, **k)

def common_addrs():
    V(f"v_and_b32 v{vT2}, 31, v{vLane}", vT2, [vLane])
    V(f"v_lshrrev_b32 v{vT3}, 5, v{vLane}", vT3, [vLane])
    V(f"v_and_b32 v{vT}, 15, v{vLane}", vT)
    V(f"v_xor_b32 v{vT}, v{vT}, v{vT3}", vT)
    V(f"v_lshlrev_b32 v{vT}, 4, v{vT}", vT)
    V(f"v_lshl_add_u32 v{vT}, v{vT2}, 8, v{vT}", vT)
    for s in range(8):
        V(f"v_xor_b32 v{vKaddr+s}, {32*s}, v{vT}", vKaddr+s)
    V(f"v_bfe_u32 v{vT}, v{vLane}, 2, 2", vT)
    V(f"v_lshl_add_u32 v{vL}, v{vT3}, 2, v{vT}", vL)
    V(f"v_lshlrev_b32 v{vL}, 8, v{vL}", vL)
    V(f"v_lshl_add_u32 v{vL}, v{vT}, 6, v{vL}", vL)
    V(f"v_bfe_u32 v{vT}, v{vLane}, 4, 1", vT)
    V(f"v_lshl_add_u32 v{vL}, v{vT}, 5, v{vL}", vL)
    V(f"v_and_b32 v{vT}, 1, v{vLane}", vT)
    V(f"v_lshl_add_u32 v{vL}, v{vT}, 4, v{vL}", vL)
    V(f"v_bfe_u32 v{vT}, v{vLane}, 1, 1", vT)
    V(f"v_lshl_add_u32 v{vL}, v{vT}, 3, v{vL}", vL)
    V(f"v_add_u32 v{vL}, {LDS_V}, v{vL}", vL)
    for t in range(4):
        V(f"v_xor_b32 v{vVaddr+t}, {64*t}, v{vL}", vVaddr+t)
    A.salu(f"s_lshl_b32 s{sT}, s{sWave}, 12")
    A.salu(f"s_add_u32 s{sT}, s{sT}, {LDS_ST}")
    V(f"v_and_b32 v{vT}, 7, v{vLane}", vT)
    V(f"v_xor_b32 v{vT}, v{vT}, v{vT3}", vT)
    V(f"v_lshlrev_b32 v{vT}, 4, v{vT}", vT)
    V(f"v_lshl_add_u32 v{vT}, v{vT2}, 7, v{vT}", vT)
    V(f"v_add_u32 v{vT}, s{sT}, v{vT}", vT)
    for i in range(4):
        V(f"v_xor_b32 v{vWaddr+i}, {32*i}, v{vT}", vWaddr+i)
    V(f"v_lshrrev_b32 v{vT2}, 3, v{vLane}", vT2)
    V(f"v_and_b32 v{vT3}, 7, v{vLane}", vT3)
    V(f"v_xor_b32 v{vT}, v{vT2}, v{vT3}", vT)
    V(f"v_lshlrev_b32 v{vT}, 4, v{vT}", vT)
    V(f"v_lshl_add_u32 v{vT}, v{vT2}, 7, v{vT}", vT)
    V(f"v_add_u32 v{vRaddr}, s{sT}, v{vT}", vRaddr)
    V(f"v_lshlrev_b32 v{vOst}, 4, v{vT3}", vOst)
    V(f"v_lshl_add_u32 v{vOst}, v{vT2}, 8, v{vOst}", vOst)
    A.salu(f"s_lshl_b32 s40, s{sWave}, 2")
    A.salu(f"s_add_u32 s40, s40, {LDS_ST}")
    V(f"v_lshlrev_b32 v{vFW}, 12, v{vT3}", vFW)
    V(f"v_add_u32 v{vFW}, s40, v{vFW}", vFW)
    V(f"v_mov_b32 v{vFR}, s{sT}", vFR)
    c = math.log2(math.e) / math.sqrt(128.0)
    A.salu(f"s_mov_b32 s{sC}, {hex(struct.unpack('<I', struct.pack('<f', c))[0])}")
    A.salu(f"s_mov_b32 s{sLim}, {hex((127+P['limit'])<<23)}")
    A.salu(f"s_mov_b32 s{sOo}, s{sQoff}")
    A.salu(f"s_add_u32 s{sOo2}, s{sQoff}, 4096")

SLOW = []
def flag_set(val):
    V(f"v_mov_b32 v{vX+8}, {val}", vX+8)
    A.ds(f"ds_write_b32 v{vFW}, v{vX+8}", rd=[vFW, vX+8])
def flag_read(allw):
    i = A.ds(f"ds_read_b128 {vr(vX,4)}, v{vFR} offset:16", wr=R(vX,4), rd=[vFR])
    if allw: i = A.ds(f"ds_read_b128 {vr(vX+4,4)}, v{vFR}", wr=R(vX+4,4), rd=[vFR])
    return i
def flag_cmp(val, allw):
    V(f"v_min3_u32 v{vX}, v{vX}, v{vX+1}, v{vX+2}", vX, R(vX,3))
    if allw:
        V(f"v_min3_u32 v{vX+4}, v{vX+4}, v{vX+5}, v{vX+6}", vX+4, R(vX+4,3))
        V(f"v_min3_u32 v{vX}, v{vX}, v{vX+4}, v{vX+7}", vX, [vX, vX+4, vX+7])
    V(f"v_min_u32 v{vX}, v{vX}, v{vX+3}", vX, [vX, vX+3])
    V(f"v_cmp_gt_u32 s[46:47], {val}, v{vX}", [], [vX], sw=[46])
    A.salu("s_cmp_lg_u64 s[46:47], 0")
def flag_check(opid, val, allw):
    n = len(SLOW); SLOW.append((val, allw))
    A.wait_lg(opid)
    flag_cmp(val, allw)
    A.branch(f"s_cbranch_scc1 L_slow{n}")
    A.label(f"L_back{n}")
def slow_paths():
    for n, (val, allw) in enumerate(SLOW):
        A.label(f"L_slow{n}")
        flag_read(allw)
        A.wait_lg_all()
        flag_cmp(val, allw)
        A.branch(f"s_cbranch_scc1 L_slow{n}")
        A.branch(f"s_branch L_back{n}")

def tile(mode, vQ, fb_label):
    LA = P["la_a0"] if mode == "a0" else P["la"]
    split = (mode == "a0")
    fill = {g: [] for g in range(0, 160)}
    pre_read = {}
    G0 = 11
    b0 = sb(0)
    def mx():
        V(f"v_max3_f32 v{vM}, v{b0}, v{b0+1}, v{b0+2}", vM, R(b0,3))
        V(f"v_max3_f32 v{vT}, v{b0+3}, v{b0+4}, v{b0+5}", vT, R(b0+3,3))
        for i in range(5):
            d = vM if i % 2 == 0 else vT
            V(f"v_max3_f32 v{d}, v{d}, v{b0+6+2*i}, v{b0+7+2*i}", d, [d, b0+6+2*i, b0+7+2*i])
        V(f"v_max_f32 v{vL}, v{vM}, v{vT}", vL, [vM, vT])
        V(f"v_max_f32 v{vM}, v{vM}, v{vT}", vM, [vM, vT])
    fill[9].append(mx)
    def mx2():
        A.perm(vM, vL)
        V(f"v_max_f32 v{vM}, v{vM}, v{vL}", vM, [vM, vL])
        V(f"v_mul_f32 v{vM}, s{sC}, v{vM}", vM, [vM])
    fill[10].append(mx2)
    def reg(p, k): return sb(p // 8) + 2*(p % 8) + k
    for g in range(G0, G0 + 66):
        pf, pe, pa = g - G0, g - G0 - 1, g - G0 - 2
        def f(pf=pf, pe=pe, pa=pa):
            for k in range(2):
                if 0 <= pe < 64:
                    r = reg(pe, k); A.trans(f"v_exp_f32 v{r}, v{r}", [r], [r])
                if 0 <= pf < 64:
                    r = reg(pf, k); V(f"v_fma_f32 v{r}, v{r}, s{sC}, -v{vM}", r, [r, vM])
            if 0 <= pa < 64:
                a, b = reg(pa, 0), reg(pa, 1)
                if pa == 0: V(f"v_add_f32 v{vS0}, v{a}, v{b}", vS0, [a, b])
                elif pa == 1: V(f"v_add_f32 v{vS1}, v{a}, v{b}", vS1, [a, b])
                else:
                    V(f"v_add_f32 v{vS0}, v{vS0}, v{a}", vS0, [vS0, a])
                    V(f"v_add_f32 v{vS1}, v{vS1}, v{b}", vS1, [vS1, b])
                V(f"v_cvt_pk_bf16_f32 v{vP+pa}, v{a}, v{b}", vP+pa, [a, b])
        fill[g].append(f)
    gl = G0 + 66
    def l1():
        V(f"v_add_f32 v{vL}, v{vS0}, v{vS1}", vL, [vS0, vS1])
        V(f"v_add_f32 v{vT}, v{vS0}, v{vS1}", vT, [vS0, vS1])
        if split: A.nop(1)
    def l2():
        A.perm(vL, vT)
        V(f"v_add_f32 v{vL}, v{vL}, v{vT}", vL, [vL, vT])
    def l3():
        V(f"v_cmp_ngt_f32 vcc, s{sLim}, v{vL}", [], [vL], sw=["vcc"])
        A.trans(f"v_rcp_f32 v{vL}, v{vL}", [vL], [vL])
    def l4():
        A.branch(f"s_cbranch_vccnz {fb_label}")
    fill[gl].append(l1); fill[gl+1].append(l2); fill[gl+2].append(l3)
    if not split: fill[gl+3].append(l4)
    obuf = [sb(2), sb(0), sb(1), sb(2)]
    rd_ids = {}
    for t in range(4):
        E = 64 + 16*(t+1) + 1
        o = obuf[t]
        for i in range(9):
            def f(i=i, o=o):
                if i < 8:
                    V(f"v_mul_f32 v{o+2*i}, v{vL}, v{o+2*i}", o+2*i, [o+2*i, vL])
                    V(f"v_mul_f32 v{o+2*i+1}, v{vL}, v{o+2*i+1}", o+2*i+1, [o+2*i+1, vL])
                if i >= 1:
                    k = i-1
                    V(f"v_cvt_pk_bf16_f32 v{o+k}, v{o+2*k}, v{o+2*k+1}", o+k, [o+2*k, o+2*k+1])
            fill[E+i].append(f)
        for x in range(2):
            def w(x=x, o=o, t=t):
                A.ds(f"ds_write_b128 v{vWaddr+2*(t%2)+x}, {vr(o+4*x,4)}", rd=[vWaddr+2*(t%2)+x]+R(o+4*x,4))
            fill[E+4+4*x].append(w)
        if t % 2 == 1:
            for r in range(4):
                def rdb(r=r, t=t):
                    rd_ids[(t,r)] = A.ds(f"ds_read_b128 {vr(vX+4*r,4)}, v{vRaddr} offset:{1024*r}", wr=R(vX+4*r,4), rd=[vRaddr])
                fill[E+9+r//2].append(rdb)
                def st(r=r, t=t):
                    A.wait_lg(rd_ids[(t,r)])
                    so = sOo if r < 2 else sOo2
                    A.vstore(f"buffer_store_dwordx4 {vr(vX+4*r,4)}, v{vOst}, s[{sO}:{sO+3}], s{so} offen offset:{128*(t//2)+2048*(r%2)} {P['st']}".rstrip(), R(vX+4*r,4), rd=[vOst])
                fill[E+13+r//2*1].append(st)
    fid = {}
    def vdma(i):
        if i % 4 == 0:
            A.m0(f"s_add_u32 m0, s41, {LDS_V + 32768 + (i//4)*4096}")
            A.salu(f"s_add_u32 s43, s42, {32768 + (i//4)*4096}")
        A.vload(f"buffer_load_dwordx4 v{vD}, s[{sV}:{sV+3}], s43 offen offset:{1024*(i%4)} lds", rd=[vD], lds=True)
    if not split: fill[P["pgap"]].append(lambda: A.raw(f"s_setprio {P['p2']}"))
    if mode == "a0":
        for g in (1, 2, 3):
            f0 = 16*g
            fill[f0 - LA - 3].append(lambda g=g: fid.__setitem__(g, flag_read(False)))
            pre_read[f0] = lambda g=g: (stamp(f"k{g}a"), flag_check(fid[g], g+1, False), stamp(f"k{g}b"))
        if P["vstart"] >= 0:
            for i in range(8):
                fill[P["vstart"] + i*P["vstep"]].append(lambda i=i: vdma(i))
    if mode == "b0":
        assert P["q1b"] > P["nb"]
        fill[P["nb"]].append(lambda: (stamp("k1a"), A.wait_vm(0), flag_set(5), stamp("k1b")))
        for s in range(8):
            fill[P["q1b"] + s*P["q1step"]].append(lambda s=s: qload(vQ1, sQoff1, s))
        fill[64 - LA - 3].append(lambda: fid.__setitem__(9, flag_read(True)))
        pre_read[64] = lambda: (stamp("bar3a"), flag_check(fid[9], 5, True), stamp("bar3b"))
    rid = {}
    def rd(f):
        if f in pre_read: pre_read[f]()
        b = vFrag + 4*(f % 8)
        if f < 64:
            j, s = divmod(f, 8)
            rid[f] = A.ds(f"ds_read_b128 {vr(b,4)}, v{vKaddr+s} offset:{8192*j}", wr=R(b,4), rd=[vKaddr+s])
        else:
            t, u = divmod(f-64, 16)
            A.ds(f"ds_read_b64_tr_b16 {vr(b,2)}, v{vVaddr+t} offset:{4096*u}", wr=R(b,2), rd=[vVaddr+t])
            rid[f] = A.ds(f"ds_read_b64_tr_b16 {vr(b+2,2)}, v{vVaddr+t} offset:{4096*u+2048}", wr=R(b+2,2), rd=[vVaddr+t])
    for f in range(LA): rd(f)
    W = P["wstep"]
    for n in range(128):
        if split and n == 64:
            for g in range(64, gl+3):
                for f in fill[g]: f()
                fill[g] = []
            stamp("ph1end")
            A.raw(f"s_setprio {P['p2']}")
            if P["vstart"] < 0:
                for i in range(8): vdma(i)
            for s in range(8): qload(vQ1, sQoff1, s)
            stamp("q0b")
            A.wait_vm(8)
            flag_set(5)
            stamp("bar3a")
            flag_check(flag_read(True), 5, True)
            stamp("bar3b")
            l4()
            LA = P["la"]
            for f in range(64, 64+LA): rd(f)
        if n == 64 and not split: stamp("ph1end" if mode != "t1" else "ph1end1")
        if n % W == 0:
            A.wait_lg(rid[min(n + W - 1, 127)])
        b = vFrag + 4*(n % 8)
        if n < 64:
            j, s = divmod(n, 8)
            A.mfma(sb(j), b, vQ + 4*s, None if s == 0 else sb(j))
        else:
            t, u = divmod(n-64, 16)
            A.mfma(obuf[t], b, vP + 4*u, None if u == 0 else obuf[t])
        f = n + LA
        if f < 128 and not (split and n < 64 and f >= 64): rd(f)
        for fn in fill[n]: fn()
    stamp("ph2end" if mode != "t1" else "ph2end1")
    for fn in fill[128]: fn()
    A.nop(11)
    for g in range(129, 160):
        for fn in fill[g]: fn()

def fallback():
    vS = 128; vO = 192; vM2 = vT; vL2 = vT; vSum = 26
    A.wait_lg_all()
    A.nop(15)
    rid = {}
    def rdk(n):
        j, s = divmod(n, 8)
        b = vFrag + 4*(n % 8)
        rid[n] = A.ds(f"ds_read_b128 {vr(b,4)}, v{vKaddr+s} offset:{8192*j}", wr=R(b,4), rd=[vKaddr+s])
    for n in range(8): rdk(n)
    for n in range(64):
        j, s = divmod(n, 8)
        A.wait_lg(rid[n])
        A.mfma(vS+16*j, vFrag+4*(n%8), vQ0+4*s, None if s == 0 else vS+16*j)
        if n + 8 < 64: rdk(n+8)
    A.nop(12)
    V(f"v_max_f32 v{vM}, v{vS}, v{vS+1}", vM, [vS, vS+1])
    for i in range(1, 64):
        V(f"v_max3_f32 v{vM}, v{vM}, v{vS+2*i}, v{vS+2*i+1}", vM, [vM, vS+2*i, vS+2*i+1])
    V(f"v_mov_b32 v{vM2}, v{vM}", vM2, [vM])
    A.nop(1)
    A.perm(vM, vM2)
    V(f"v_max_f32 v{vM}, v{vM}, v{vM2}", vM, [vM, vM2])
    V(f"v_mul_f32 v{vM}, s{sC}, v{vM}", vM, [vM])
    V(f"v_mov_b32 v{vSum}, 0", vSum)
    for p in range(64):
        a, b = vS+2*p, vS+2*p+1
        V(f"v_fma_f32 v{a}, v{a}, s{sC}, -v{vM}", a, [a, vM])
        V(f"v_fma_f32 v{b}, v{b}, s{sC}, -v{vM}", b, [b, vM])
        A.trans(f"v_exp_f32 v{a}, v{a}", [a], [a])
        A.trans(f"v_exp_f32 v{b}, v{b}", [b], [b])
        V(f"v_add_f32 v{vSum}, v{vSum}, v{a}", vSum, [vSum, a])
        V(f"v_add_f32 v{vSum}, v{vSum}, v{b}", vSum, [vSum, b])
        V(f"v_cvt_pk_bf16_f32 v{vP+p}, v{a}, v{b}", vP+p, [a, b])
    V(f"v_mov_b32 v{vL}, v{vSum}", vL, [vSum])
    A.nop(1)
    A.perm(vL, vSum)
    V(f"v_add_f32 v{vL}, v{vL}, v{vSum}", vL, [vL, vSum])
    A.trans(f"v_rcp_f32 v{vL}, v{vL}", [vL], [vL])
    rid = {}
    def rdv(n):
        u, t = divmod(n, 4)
        b = vFrag + 4*(n % 8)
        A.ds(f"ds_read_b64_tr_b16 {vr(b,2)}, v{vVaddr+t} offset:{4096*u}", wr=R(b,2), rd=[vVaddr+t])
        rid[n] = A.ds(f"ds_read_b64_tr_b16 {vr(b+2,2)}, v{vVaddr+t} offset:{4096*u+2048}", wr=R(b+2,2), rd=[vVaddr+t])
    for n in range(7): rdv(n)
    for n in range(64):
        u, t = divmod(n, 4)
        A.wait_lg(rid[n])
        A.mfma(vO+16*t, vFrag+4*(n%8), vP+4*u, None if u == 0 else vO+16*t)
        if n + 7 < 64: rdv(n+7)
    A.nop(12)
    for t in range(4):
        for x in range(2):
            b = vO + 16*t + 8*x
            for i in range(8):
                V(f"v_mul_f32 v{b+i}, v{b+i}, v{vL}", b+i, [b+i, vL])
            d = vP + 8*t + 4*x
            for i in range(4):
                V(f"v_cvt_pk_bf16_f32 v{d+i}, v{b+2*i}, v{b+2*i+1}", d+i, [b+2*i, b+2*i+1])
            A.vstore(f"buffer_store_dwordx4 {vr(d,4)}, v{vQoff}, s[{sO}:{sO+3}], s{sOo} offen offset:{64*t+32*x}", R(d,4), rd=[vQoff])
    A.nop(2)

def stamp_dump():
    if not P["stamp"]: return
    A.wait_vm(0)
    stamp("end")
    A.raw("s_memrealtime s[58:59]")
    A.raw("s_load_dwordx2 s[46:47], s[0:1], 40")
    A.raw("s_waitcnt lgkmcnt(0)")
    A.raw("s_mov_b32 s48, s46"); A.raw("s_mov_b32 s49, s47"); A.raw("s_mov_b32 s50, 0x1000000"); A.raw("s_mov_b32 s51, 0x00020000")
    A.raw(f"s_lshl_b32 s52, s2, 3"); A.raw(f"s_add_u32 s52, s52, s{sWave}"); A.raw("s_lshl_b32 s52, s52, 7")
    A.raw("s_getreg_b32 s53, hwreg(HW_REG_XCC_ID)")
    A.raw("s_getreg_b32 s54, hwreg(HW_REG_HW_ID)")
    vals = [56, 58, 53, 54] + [60+2*i for i in range(len(SNAMES))]
    A.raw("v_mov_b32 v3, 0")
    for n, sreg in enumerate(vals):
        A.raw(f"v_mov_b32 v16, s{sreg}")
        A.raw(f"buffer_store_dword v16, v3, s[48:51], s52 offen offset:{4*n}")
    A.raw("s_waitcnt vmcnt(0)")

def main():
    if P["stamp"]:
        A.raw("s_memrealtime s[56:57]")
        stamp("start")
    A.salu("s_cmp_ge_u32 s2, 256")
    A.branch("s_cbranch_scc1 L_end")
    A.raw("s_load_dwordx4 s[4:7], s[0:1], 0")
    A.raw("s_load_dwordx4 s[32:35], s[0:1], 16")
    V(f"v_lshrrev_b32 v{vT}, 6, v0", vT)
    V(f"v_and_b32 v{vLane}, 63, v0", vLane)
    A.rfl(sWave, vT)
    if P["mapping"] == "contig":
        A.salu("s_and_b32 s36, s2, 7"); A.salu("s_lshl_b32 s36, s36, 4"); A.salu("s_lshr_b32 s37, s2, 4"); A.salu("s_add_u32 s36, s36, s37")
    else:
        A.salu("s_lshr_b32 s36, s2, 4"); A.salu("s_lshl_b32 s36, s36, 3"); A.salu("s_and_b32 s37, s2, 7"); A.salu("s_add_u32 s36, s36, s37")
    A.salu("s_bfe_u32 s37, s2, 0x10003")
    A.salu(f"s_lshl_b32 s{sKVoff}, s36, 16")
    A.salu("s_lshl_b32 s38, s36, 18")
    A.salu("s_lshl_b32 s37, s37, 17")
    A.salu("s_add_u32 s38, s38, s37")
    A.salu(f"s_lshl_b32 s39, s{sWave}, 13")
    A.salu(f"s_add_u32 s{sQoff}, s38, s39")
    A.salu(f"s_add_u32 s{sQoff1}, s{sQoff}, 65536")
    V(f"v_and_b32 v{vT2}, 31, v{vLane}", vT2)
    V(f"v_lshrrev_b32 v{vT3}, 5, v{vLane}", vT3)
    V(f"v_lshlrev_b32 v{vQoff}, 8, v{vT2}", vQoff)
    V(f"v_lshl_add_u32 v{vQoff}, v{vT3}, 4, v{vQoff}", vQoff)
    V(f"v_lshrrev_b32 v{vT2}, 4, v{vLane}", vT2)
    V(f"v_and_b32 v{vT3}, 15, v{vLane}", vT3)
    A.salu(f"s_cmp_ge_u32 s{sWave}, 4")
    A.branch("s_cbranch_scc1 L_b")
    A.raw("s_waitcnt lgkmcnt(0)")
    srd(sQ, 4, 0x2000000)
    for s in range(8): qload(vQ0, sQoff, s)
    srd(sK, 6, 0x800000); srd(sV, 32, 0x800000); srd(sO, 34, 0x2000000)
    V(f"v_lshlrev_b32 v{vD}, 2, v{vT2}", vD)
    V(f"v_xor_b32 v{vD}, v{vD}, v{vT3}", vD)
    V(f"v_lshlrev_b32 v{vD}, 4, v{vD}", vD)
    V(f"v_lshl_add_u32 v{vD}, v{vT2}, 8, v{vD}", vD)
    A.salu(f"s_mov_b32 s41, s39")
    A.salu(f"s_add_u32 s42, s{sKVoff}, s41")
    common_addrs()
    flag_set(0)
    A.salu(f"s_mov_b32 s{sFb}, 0")
    A.raw(f"s_setprio {P['p1']}")
    A.wait_lg_all()
    stamp("issued")
    A.barrier()
    stamp("bar1a")
    A.wait_vm(0)
    stamp("bar1b")
    tile("a0", vQ0, "L_fb0")
    A.branch("s_branch L_t1")
    A.label("L_b")
    V(f"v_xor_b32 v{vD}, v{vT2}, v{vT3}", vD)
    V(f"v_lshlrev_b32 v{vD}, 4, v{vD}", vD)
    V(f"v_lshl_add_u32 v{vD}, v{vT2}, 8, v{vD}", vD)
    for i in range(1, 4):
        V(f"v_xor_b32 v{vD+i}, {64*i}, v{vD}", vD+i)
    V(f"v_lshlrev_b32 v{vX+12}, 2, v{vT2}", vX+12)
    V(f"v_xor_b32 v{vX+12}, v{vX+12}, v{vT3}", vX+12)
    V(f"v_lshlrev_b32 v{vX+12}, 4, v{vX+12}", vX+12)
    V(f"v_lshl_add_u32 v{vX+12}, v{vT2}, 8, v{vX+12}", vX+12)
    A.salu(f"s_lshl_b32 s41, s{sWave}, 12")
    A.salu(f"s_sub_u32 s41, s41, {4*4096}")
    A.salu(f"s_add_u32 s42, s{sKVoff}, s41")
    A.raw("s_waitcnt lgkmcnt(0)")
    srd(sK, 6, 0x800000)
    def unit(u):
        if u < 4:
            A.m0(f"s_add_u32 m0, s41, {LDS_K + u*16384}")
            A.salu(f"s_add_u32 s43, s42, {u*16384}")
            for i in range(4):
                A.vload(f"buffer_load_dwordx4 v{vD+i}, s[{sK}:{sK+3}], s43 offen offset:{1024*i} lds", rd=[vD+i], lds=True)
        elif u < 6:
            for s in range(4): qload(vQ0, sQoff, 4*(u-4)+s)
        else:
            A.m0(f"s_add_u32 m0, s41, {LDS_V + (u-6)*16384}")
            A.salu(f"s_add_u32 s43, s42, {(u-6)*16384}")
            for i in range(4):
                A.vload(f"buffer_load_dwordx4 v{vX+12}, s[{sV}:{sV+3}], s43 offen offset:{1024*i} lds", rd=[vX+12], lds=True)
    D = P["depth"]
    unit(0)
    srd(sQ, 4, 0x2000000); srd(sV, 32, 0x800000); srd(sO, 34, 0x2000000)
    unit(1)
    common_addrs()
    flag_set(0)
    A.salu(f"s_mov_b32 s{sFb}, 0")
    for u in range(2, D): unit(u)
    nxt = D
    A.wait_lg_all()
    stamp("issued")
    A.wait_vm(4*(nxt-1))
    stamp("bar1a")
    A.barrier()
    stamp("bar1b")
    for g in (1, 2, 3):
        if nxt < 8: unit(nxt); nxt += 1
        A.wait_vm(4*(nxt-1-g))
        flag_set(g+1)
        if g >= 2: stamp(f"k{g}a")
    while nxt < 8: unit(nxt); nxt += 1
    stamp("k3b")
    fr = flag_read(False)
    A.wait_vm(8)
    flag_check(fr, 4, False)
    A.raw(f"s_setprio {P['p1']}")
    stamp("q0b")
    tile("b0", vQ0, "L_fb0")
    A.label("L_t1")
    stamp("t0end")
    A.salu(f"s_mov_b32 s{sOo}, s{sQoff1}")
    A.salu(f"s_add_u32 s{sOo2}, s{sQoff1}, 4096")
    A.raw(f"s_setprio {P['p1']}")
    A.wait_vm(8)
    stamp("q1")
    tile("t1", vQ1, "L_fb1")
    A.label("L_done")
    stamp("t1end")
    stamp_dump()
    A.label("L_end")
    A.raw("s_endpgm")
    slow_paths()
    A.label("L_fb1")
    A.salu(f"s_mov_b32 s{sFb}, 1")
    for i in range(32): V(f"v_mov_b32 v{vQ0+i}, v{vQ1+i}", vQ0+i, [vQ1+i])
    A.label("L_fb0")
    fallback()
    A.salu(f"s_cmp_eq_u32 s{sFb}, 0")
    A.branch("s_cbranch_scc1 L_t1")
    A.branch("s_branch L_done")
    errs = check(A.L, "v2")
    hdr = f"""; Kernarg layout for this problem (48 bytes, ptrs only, base s[0:1]):
;   offset   0: d_in[0] q  shape=(16, 32, 256, 128) dtype=bfloat16
;   offset   8: d_in[1] k  shape=(16, 8, 256, 128) dtype=bfloat16
;   offset  16: d_in[2] v  shape=(16, 8, 256, 128) dtype=bfloat16
;   offset  24: d_out     shape=(16, 32, 256, 128) dtype=bfloat16 (2 bytes/elem)
; @launch grid=(256,1,1) block=(512,1,1) lds={LDS_BYTES}
.amdgcn_target "amdgcn-amd-amdhsa--gfx950"
.text
.globl {NAME}_kernel
.p2align 8
.type {NAME}_kernel,@function
{NAME}_kernel:
"""
    ftr = f"""
.section .rodata,"a"
.p2align 6
.amdhsa_kernel {NAME}_kernel
  .amdhsa_next_free_vgpr 256
  .amdhsa_next_free_sgpr 102
  .amdhsa_accum_offset 256
  .amdhsa_group_segment_fixed_size 0
  .amdhsa_kernarg_size 48
  .amdhsa_user_sgpr_count 2
  .amdhsa_user_sgpr_kernarg_segment_ptr 1
  .amdhsa_system_sgpr_workgroup_id_x 1
.end_amdhsa_kernel
"""
    open(outpath, "w").write(hdr + A.text() + ftr)
    print("wrote", outpath, len(A.L), "lines; hazards:", errs, "stamps:", SNAMES)
main()
```

```python
import sys
NAME = "standalone__gqa_softmax__near_ridge"
def wrap(path, L, grid, block, lds, nv):
    open(path, "w").write(f"""; @launch grid=({grid},1,1) block=({block},1,1) lds={lds}
.amdgcn_target "amdgcn-amd-amdhsa--gfx950"
.text
.globl {NAME}_kernel
.p2align 8
.type {NAME}_kernel,@function
{NAME}_kernel:
""" + "\n".join(L) + f"""
.section .rodata,"a"
.p2align 6
.amdhsa_kernel {NAME}_kernel
  .amdhsa_next_free_vgpr {nv}
  .amdhsa_next_free_sgpr 102
  .amdhsa_accum_offset {nv}
  .amdhsa_group_segment_fixed_size 0
  .amdhsa_kernarg_size 48
  .amdhsa_user_sgpr_count 2
  .amdhsa_user_sgpr_kernarg_segment_ptr 1
  .amdhsa_system_sgpr_workgroup_id_x 1
.end_amdhsa_kernel
""")
```

```python
import sys
from gen_mem2_wrap import wrap
def gen(path, shape=32, lds=1, valu="full", iters=16, nq=1, dot=0, al=0, var="", trace=0):
    L = []
    e = lambda s: L.append("    " + s)
    e("s_cmp_ge_u32 s2, 256"); e("s_cbranch_scc1 L_end")
    e("s_load_dwordx4 s[4:7], s[0:1], 0"); e("s_load_dwordx4 s[32:35], s[0:1], 16")
    e("v_lshrrev_b32 v16, 6, v0"); e("v_and_b32 v1, 63, v0"); e("v_readfirstlane_b32 s24, v16")
    e("v_lshlrev_b32 v3, 4, v1")
    e("s_waitcnt lgkmcnt(0)")
    for (srd, lo, n) in ((8,4,0x2000000),):
        e(f"s_mov_b32 s{srd}, s{lo}"); e(f"s_mov_b32 s{srd+1}, s{lo+1}"); e(f"s_mov_b32 s{srd+2}, {hex(n)}"); e(f"s_mov_b32 s{srd+3}, 0x00020000")
    e("s_lshl_b32 s25, s2, 17"); e("s_lshl_b32 s41, s24, 13"); e("s_add_u32 s42, s25, s41")
    for i in range(8):
        e(f"s_add_u32 m0, s41, {i*1024}"); e(f"s_add_u32 s43, s42, {i*1024}")
        e(f"buffer_load_dwordx4 v3, s[8:11], s43 offen lds")
    e("s_add_u32 s43, s42, 65536")
    for i in range(16):
        e(f"buffer_load_dwordx4 v[{32+4*i}:{35+4*i}], v3, s[8:11], s43 offen offset:{(i%4)*1024}")
        if i % 4 == 3: e("s_xor_b32 s43, s43, 4096"); e("s_add_u32 s43, s43, 16")
    for r in range(96, 256): e(f"v_mov_b32 v{r}, 0")
    e("v_mov_b32 v24, 0"); e("v_mov_b32 v25, 0"); e("s_mov_b32 s28, 0x3e028f5c"); e("v_mov_b32 v21, 1.0"); e("v_mov_b32 v22, 0x3f803f80")
    e("s_waitcnt vmcnt(0)"); e("s_barrier")
    if "posB" in var:
        for r in range(64, 96): e(f"v_and_b32 v{r}, 0x00ff00ff, v{r}"); e(f"v_or_b32 v{r}, 0x3f003f00, v{r}")
    if "posA" in var:
        for r in range(32, 64): e(f"v_and_b32 v{r}, 0x00ff00ff, v{r}"); e(f"v_or_b32 v{r}, 0x3f003f00, v{r}")
    if "zero" in var:
        for r in range(32, 96): e(f"v_mov_b32 v{r}, 0")
    e("s_nop 4")
    e(f"s_mov_b32 s21, {iters}")
    e("s_memrealtime s[56:57]"); e("s_memtime s[60:61]")
    L.append(".p2align 6"); L.append("L_loop:")
    if al: e("s_nop 0")
    NU = 32
    c = [0]
    def valu_unit(u):
        if valu == "none": return []
        o = []
        src = 192 + 16*((u//8 + 2) % 4) + 2*(u % 8)
        p = u//2
        W = lambda k: 128 + 2*(k % 16)
        src = 192 + 16*((u//8 + 2) % 4) + 4*(p % 4)
        if u % 2 == 0:
            if valu == "full":
                o += [f"v_fma_f32 v{W(p)}, v{src}, s28, -v21", f"v_exp_f32 v{W(p-1)}, v{W(p-1)}", f"v_fma_f32 v{W(p)+1}, v{src+1}, s28, -v21"]
            else:
                o += [f"v_exp_f32 v{W(p-1)}, v{src}"]
            o += [f"v_mul_f32 v{168+u%8}, v21, v{src+2}"]
            if u % 4 == 0: o += [f"v_cvt_pk_bf16_f32 v{176+u%8}, v{src+2}, v{src+3}"]
        else:
            o += [f"v_exp_f32 v{W(p-1)+1}, v{W(p-1)+1 if valu=='full' else src+1}"]
            if not dot: o += [f"v_add_f32 v24, v24, v{W(p-2)}", f"v_add_f32 v25, v25, v{W(p-2)+1}"]
            o += [f"v_cvt_pk_bf16_f32 v{160+p%8}, v{W(p-2)}, v{W(p-2)+1}"]
            if dot: o += [f"v_dot2c_f32_bf16 v{24+p%2}, v22, v{160+(p-1)%8}"]
        return o
    for uu in range(NU*(trace if trace else 1)):
        u = uu % NU
        if trace and u == 0: e(f"s_memrealtime s[{64+2*(uu//NU)}:{65+2*(uu//NU)}]")
        fr = 32 + 4*((u//nq) % 8)
        acc = 192 + 16*((u//8) % 4)
        bq = 64 + 4*(u % 8)
        first = (u % 8 == 0)
        if "rr" in var: acc = 192 + 16*(u % 4); first = (u < 4)
        if "sameA" in var: fr = 32 + 4*((u//4) % 8)
        if "sameB" in var: bq = 64 + 4*((u//4) % 8)
        if "constA" in var: fr = 32
        if "constB" in var: bq = 64
        if lds and u % (2*nq) == 0: e(f"s_waitcnt lgkmcnt({5 if nq==1 else 2})")
        vs = valu_unit(u)
        if shape == 32:
            cs = "0" if first else f"v[{acc}:{acc+15}]"
            e(f"v_mfma_f32_32x32x16_bf16 v[{acc}:{acc+15}], v[{fr}:{fr+3}], v[{bq}:{bq+3}], {cs}")
            if lds and u % nq == nq-1:
                f2 = 32 + 4*((u//nq + (7 if nq==1 else 4)) % 8)
                e(f"ds_read_b128 v[{f2}:{f2+3}], v3 offset:{1024*((u*7) % 64)}")
            for x in vs: e(x)
        else:
            for h in range(2):
                a4 = acc + 8*(u%2) + 4*h
                b2 = 64 + 4*((u + 4*h) % 8)
                cs = "0" if (u % 8 < 2) else f"v[{a4}:{a4+3}]"
                e(f"v_mfma_f32_16x16x32_bf16 v[{a4}:{a4+3}], v[{fr}:{fr+3}], v[{b2}:{b2+3}], {cs}")
                if h == 1 and lds and u % nq == nq-1:
                    f2 = 32 + 4*((u//nq + (7 if nq==1 else 4)) % 8)
                    e(f"ds_read_b128 v[{f2}:{f2+3}], v3 offset:{1024*((u*7) % 64)}")
                k = (len(vs)+1)//2
                for x in (vs[:k] if h == 0 else vs[k:]): e(x)
    e("s_sub_u32 s21, s21, 1"); e("s_cmp_lg_u32 s21, 0"); e("s_cbranch_scc1 L_loop")
    e("s_memtime s[62:63]")
    e("s_memrealtime s[58:59]")
    e("s_load_dwordx2 s[46:47], s[0:1], 40")
    e("s_waitcnt lgkmcnt(0)")
    e("s_mov_b32 s48, s46"); e("s_mov_b32 s49, s47"); e("s_mov_b32 s50, 0x1000000"); e("s_mov_b32 s51, 0x00020000")
    e(f"s_lshl_b32 s52, s2, 3"); e(f"s_add_u32 s52, s52, s24"); e("s_lshl_b32 s52, s52, 7")
    e("s_getreg_b32 s53, hwreg(HW_REG_XCC_ID)"); e("s_getreg_b32 s54, hwreg(HW_REG_HW_ID)")
    vals = [56, 58, 53, 54, 60, 62] + [64+2*i for i in range(trace)]
    e("v_mov_b32 v3, 0")
    for n, sreg in enumerate(vals):
        e(f"v_mov_b32 v16, s{sreg}")
        e(f"buffer_store_dword v16, v3, s[48:51], s52 offen offset:{4*n}")
    e("s_waitcnt vmcnt(0)")
    L.append("L_end:"); e("s_endpgm")
    wrap(path, L, 256, 512, 131072, 256)
I = 8
gen("pw_32_full.s", 32, 1, "full", I)
gen("pw_32_full_al.s", 32, 1, "full", I, al=1)
gen("pw_16_full.s", 16, 1, "full", I)
gen("pw_32_nofma.s", 32, 1, "nofma", I)
gen("pw_16_nofma.s", 16, 1, "nofma", I)
gen("pw_32_nofma_dot.s", 32, 1, "nofma", I, dot=1)
gen("pw_32_full_q2.s", 32, 1, "full", I, nq=2)
gen("pw_32_nolds.s", 32, 0, "full", I)
gen("pw_32_nov.s", 32, 1, "none", I)
gen("pw_16_nov.s", 16, 1, "none", I)
gen("pw_32_bare.s", 32, 0, "none", I)
gen("pw_16_bare.s", 16, 0, "none", I)

for v in ("rr", "rr_sameA", "rr_sameB", "constA", "constB", "posA", "posB", "zero", "constA_constB"):
    gen(f"pb_32_{v}.s", 32, 0, "none", I, var=v)

gen("pt_32_bare.s", 32, 0, "none", 1, trace=18)
gen("pt_32_full.s", 32, 1, "full", 1, trace=18)
gen("pt_32_zero.s", 32, 0, "none", 1, var="zero", trace=18)
```

```python
import sys
from gen_mem2_wrap import wrap
def gen(path, shape=32, lds=1, valu="full", iters=16, nq=1, dot=0, al=0, var="", trace=0):
    L = []
    e = lambda s: L.append("    " + s)
    e("s_cmp_ge_u32 s2, 256"); e("s_cbranch_scc1 L_end")
    e("s_load_dwordx4 s[4:7], s[0:1], 0"); e("s_load_dwordx4 s[32:35], s[0:1], 16")
    e("v_lshrrev_b32 v16, 6, v0"); e("v_and_b32 v1, 63, v0"); e("v_readfirstlane_b32 s24, v16")
    e("v_lshlrev_b32 v3, 4, v1")
    e("s_waitcnt lgkmcnt(0)")
    for (srd, lo, n) in ((8,4,0x2000000),):
        e(f"s_mov_b32 s{srd}, s{lo}"); e(f"s_mov_b32 s{srd+1}, s{lo+1}"); e(f"s_mov_b32 s{srd+2}, {hex(n)}"); e(f"s_mov_b32 s{srd+3}, 0x00020000")
    e("s_lshl_b32 s25, s2, 17"); e("s_lshl_b32 s41, s24, 13"); e("s_add_u32 s42, s25, s41")
    for i in range(8):
        e(f"s_add_u32 m0, s41, {i*1024}"); e(f"s_add_u32 s43, s42, {i*1024}")
        e(f"buffer_load_dwordx4 v3, s[8:11], s43 offen lds")
    e("s_add_u32 s43, s42, 65536")
    for i in range(16):
        e(f"buffer_load_dwordx4 v[{32+4*i}:{35+4*i}], v3, s[8:11], s43 offen offset:{(i%4)*1024}")
        if i % 4 == 3: e("s_xor_b32 s43, s43, 4096"); e("s_add_u32 s43, s43, 16")
    for r in range(96, 256): e(f"v_mov_b32 v{r}, 0")
    e("v_mov_b32 v24, 0"); e("v_mov_b32 v25, 0"); e("s_mov_b32 s28, 0x3e028f5c"); e("v_mov_b32 v21, 1.0"); e("v_mov_b32 v22, 0x3f803f80")
    e("s_waitcnt vmcnt(0)"); e("s_barrier")
    if "posB" in var:
        for r in range(64, 96): e(f"v_and_b32 v{r}, 0x00ff00ff, v{r}"); e(f"v_or_b32 v{r}, 0x3f003f00, v{r}")
    if "posA" in var:
        for r in range(32, 64): e(f"v_and_b32 v{r}, 0x00ff00ff, v{r}"); e(f"v_or_b32 v{r}, 0x3f003f00, v{r}")
    if "zero" in var:
        for r in range(32, 96): e(f"v_mov_b32 v{r}, 0")
    for r in range(100, 104): e(f"v_mov_b32 v{r}, 0x3f803f80")
    e("s_nop 4")
    e(f"s_mov_b32 s21, {iters}")
    e("s_memrealtime s[56:57]"); e("s_memtime s[60:61]")
    L.append(".p2align 6"); L.append("L_loop:")
    if al: e("s_nop 0")
    NU = 32
    c = [0]
    def valu_unit(u):
        if valu == "none": return []
        o = []
        src = 192 + 16*((u//8 + 2) % 4) + 2*(u % 8)
        p = u//2
        W = lambda k: 128 + 2*(k % 16)
        src = 192 + 16*((u//8 + 2) % 4) + 4*(p % 4)
        if u % 2 == 0:
            if valu == "full":
                o += [f"v_fma_f32 v{W(p)}, v{src}, s28, -v21", f"v_exp_f32 v{W(p-1)}, v{W(p-1)}", f"v_fma_f32 v{W(p)+1}, v{src+1}, s28, -v21"]
            else:
                o += [f"v_exp_f32 v{W(p-1)}, v{src}"]
            o += [f"v_mul_f32 v{168+u%8}, v21, v{src+2}"]
            if u % 4 == 0: o += [f"v_cvt_pk_bf16_f32 v{176+u%8}, v{src+2}, v{src+3}"]
        else:
            o += [f"v_exp_f32 v{W(p-1)+1}, v{W(p-1)+1 if valu=='full' else src+1}"]
            if not dot and "ones" not in var: o += [f"v_add_f32 v24, v24, v{W(p-2)}", f"v_add_f32 v25, v25, v{W(p-2)+1}"]
            if "mix" in var and u % 4 == 1: o += [f"v_permlane16_swap_b32 v{160+(p+3)%8}, v{160+(p+4)%8}"]
            o += [f"v_cvt_pk_bf16_f32 v{160+p%8}, v{W(p-2)}, v{W(p-2)+1}"]
            if dot: o += [f"v_dot2c_f32_bf16 v{24+p%2}, v22, v{160+(p-1)%8}"]
        return o
    for uu in range(NU*(trace if trace else 1)):
        u = uu % NU
        if trace and u == 0: e(f"s_memrealtime s[{64+2*(uu//NU)}:{65+2*(uu//NU)}]")
        fr = 32 + 4*((u//nq) % 8)
        acc = 192 + 16*((u//8) % 4)
        bq = 64 + 4*(u % 8)
        first = (u % 8 == 0)
        if "rr" in var: acc = 192 + 16*(u % 4); first = (u < 4)
        if "sameA" in var: fr = 32 + 4*((u//4) % 8)
        if "sameB" in var: bq = 64 + 4*((u//4) % 8)
        if "constA" in var: fr = 32
        if "constB" in var: bq = 64
        if lds and u % (2*nq) == 0: e(f"s_waitcnt lgkmcnt({5 if nq==1 else 2})")
        vs = valu_unit(u)
        if "ones" in var and u % 8 == 4:
            if "o32" in var:
                pass
            else: e(f"v_mfma_f32_16x16x32_bf16 v[104:107], v[100:103], v[{bq}:{bq+3}], v[104:107]")
        if shape == 32 or ("mix" in var and (u//8) % 2 == 0):
            cs = "0" if first else f"v[{acc}:{acc+15}]"
            e(f"v_mfma_f32_32x32x16_bf16 v[{acc}:{acc+15}], v[{fr}:{fr+3}], v[{bq}:{bq+3}], {cs}")
            if lds and u % nq == nq-1:
                f2 = 32 + 4*((u//nq + (7 if nq==1 else 4)) % 8)
                e(f"ds_read_b128 v[{f2}:{f2+3}], v3 offset:{1024*((u*7) % 64)}")
            for x in vs: e(x)
        else:
            for h in range(2):
                a4 = acc + 8*(u%2) + 4*h
                b2 = 64 + 4*((u + 4*h) % 8)
                cs = "0" if (u % 8 < 2) else f"v[{a4}:{a4+3}]"
                e(f"v_mfma_f32_16x16x32_bf16 v[{a4}:{a4+3}], v[{fr}:{fr+3}], v[{b2}:{b2+3}], {cs}")
                if h == 1 and lds and u % nq == nq-1:
                    f2 = 32 + 4*((u//nq + (7 if nq==1 else 4)) % 8)
                    e(f"ds_read_b128 v[{f2}:{f2+3}], v3 offset:{1024*((u*7) % 64)}")
                k = (len(vs)+1)//2
                for x in (vs[:k] if h == 0 else vs[k:]): e(x)
    e("s_sub_u32 s21, s21, 1"); e("s_cmp_lg_u32 s21, 0"); e("s_cbranch_scc1 L_loop")
    e("s_memtime s[62:63]")
    e("s_memrealtime s[58:59]")
    e("s_load_dwordx2 s[46:47], s[0:1], 40")
    e("s_waitcnt lgkmcnt(0)")
    e("s_mov_b32 s48, s46"); e("s_mov_b32 s49, s47"); e("s_mov_b32 s50, 0x1000000"); e("s_mov_b32 s51, 0x00020000")
    e(f"s_lshl_b32 s52, s2, 3"); e(f"s_add_u32 s52, s52, s24"); e("s_lshl_b32 s52, s52, 7")
    e("s_getreg_b32 s53, hwreg(HW_REG_XCC_ID)"); e("s_getreg_b32 s54, hwreg(HW_REG_HW_ID)")
    vals = [56, 58, 53, 54, 60, 62] + [64+2*i for i in range(trace)]
    e("v_mov_b32 v3, 0")
    for n, sreg in enumerate(vals):
        e(f"v_mov_b32 v16, s{sreg}")
        e(f"buffer_store_dword v16, v3, s[48:51], s52 offen offset:{4*n}")
    e("s_waitcnt vmcnt(0)")
    L.append("L_end:"); e("s_endpgm")
    wrap(path, L, 256, 512, 131072, 256)
I = 8
gen("pw_32_full.s", 32, 1, "full", I)
gen("pw_32_full_al.s", 32, 1, "full", I, al=1)
gen("pw_16_full.s", 16, 1, "full", I)
gen("pw_32_nofma.s", 32, 1, "nofma", I)
gen("pw_16_nofma.s", 16, 1, "nofma", I)
gen("pw_32_nofma_dot.s", 32, 1, "nofma", I, dot=1)
gen("pw_32_full_q2.s", 32, 1, "full", I, nq=2)
gen("pw_32_nolds.s", 32, 0, "full", I)
gen("pw_32_nov.s", 32, 1, "none", I)
gen("pw_16_nov.s", 16, 1, "none", I)
gen("pw_32_bare.s", 32, 0, "none", I)
gen("pw_16_bare.s", 16, 0, "none", I)

for v in ("rr", "rr_sameA", "rr_sameB", "constA", "constB", "posA", "posB", "zero", "constA_constB"):
    gen(f"pb_32_{v}.s", 32, 0, "none", I, var=v)

gen("pt_32_bare.s", 32, 0, "none", 1, trace=18)
gen("pt_32_full.s", 32, 1, "full", 1, trace=18)
gen("pt_32_zero.s", 32, 0, "none", 1, var="zero", trace=18)

gen("pw_16_ones.s", 16, 1, "nofma", I, var="ones")
gen("pw_32_ones.s", 32, 1, "nofma", I, var="ones")
gen("pw_32_noadd.s", 32, 1, "nofma", I, var="ones_o32")
gen("pw_16_noadd.s", 16, 1, "nofma", I, var="ones_o32")
gen("pw_mix.s", 16, 1, "nofma", I, var="mix")
gen("pw_mix_ones.s", 16, 1, "nofma", I, var="mix_ones")
gen("pw_16_ones_q2.s", 16, 1, "nofma", I, nq=2, var="ones")
gen("pw_32_nofma_q2.s", 32, 1, "nofma", I, nq=2)
```

```python
import re
class Ins:
    __slots__ = ("text","kind","rd","wr","cread","states","sw","sr")
    def __init__(s, text, kind, rd=(), wr=(), cread=(), states=1, sw=(), sr=()):
        s.text=text; s.kind=kind; s.rd=set(rd); s.wr=set(wr); s.cread=set(cread); s.states=states
        s.sw=set(sw); s.sr=set(sr)

def R(b, n=1): return list(range(b, b+n))
def vr(b, n):
    return f"v{b}" if n == 1 else f"v[{b}:{b+n-1}]"

class Asm:
    def __init__(s):
        s.L = []
        s.lg = 0
        s.lgdone = 0
    def add(s, ins): s.L.append(ins); return ins
    def label(s, name): s.add(Ins(name + ":", "label", states=0))
    def comment(s, t): s.add(Ins("; " + t, "comment", states=0))
    def salu(s, t, sw=(), sr=()): s.add(Ins(t, "salu", sw=sw, sr=sr))
    def m0(s, t): s.add(Ins(t, "salu", sw=["m0"]))
    def nop(s, n): s.add(Ins(f"s_nop {n}", "nop", states=n+1))
    def raw(s, t, kind="salu"): s.add(Ins(t, kind))
    def branch(s, t): s.add(Ins(t, "branch"))
    def valu(s, t, wr=(), rd=(), sw=(), sr=()): s.add(Ins(t, "valu", rd=rd, wr=wr, sw=sw, sr=sr))
    def trans(s, t, wr=(), rd=()): s.add(Ins(t, "trans", rd=rd, wr=wr))
    def perm(s, a, b, op="v_permlane32_swap_b32"): s.add(Ins(f"{op} v{a}, v{b}", "perm", rd=[a,b], wr=[a,b]))
    def rfl(s, sd, v): s.add(Ins(f"v_readfirstlane_b32 s{sd}, v{v}", "rfl", rd=[v], sw=[sd]))
    def mfma(s, d, a, b, c):
        cs = "0" if c is None else vr(c,16)
        s.add(Ins(f"v_mfma_f32_32x32x16_bf16 {vr(d,16)}, {vr(a,4)}, {vr(b,4)}, {cs}", "mfma",
                  rd=R(a,4)+R(b,4), wr=R(d,16), cread=([] if c is None else R(c,16))))
    def mfma16(s, d, a, b, c):
        cs = "0" if c is None else vr(c,4)
        s.add(Ins(f"v_mfma_f32_16x16x32_bf16 {vr(d,4)}, {vr(a,4)}, {vr(b,4)}, {cs}", "mfma",
                  rd=R(a,4)+R(b,4), wr=R(d,4), cread=([] if c is None else R(c,4))))
    def ds(s, t, wr=(), rd=()):
        s.add(Ins(t, "ds", rd=rd, wr=wr)); s.lg += 1; return s.lg - 1
    def vload(s, t, wr=(), rd=(), sr=(), lds=False):
        s.add(Ins(t, "vdma" if lds else "vload", rd=rd, wr=wr, sr=sr))
    def vstore(s, t, data, rd=(), sr=()):
        s.add(Ins(t, "vstore", rd=list(rd)+list(data), cread=data, sr=sr))
    def wait_lg(s, opid):
        if opid < s.lgdone: return
        n = min(15, s.lg - 1 - opid)
        s.add(Ins(f"s_waitcnt lgkmcnt({n})", "wait"))
        s.lgdone = s.lg - n
    def wait_lg_all(s):
        s.add(Ins("s_waitcnt lgkmcnt(0)", "wait")); s.lgdone = s.lg
    def wait_vm(s, n): s.add(Ins(f"s_waitcnt vmcnt({n})", "wait"))
    def barrier(s): s.add(Ins("s_barrier", "salu"))
    def text(s):
        out = []
        for i in s.L:
            out.append(i.text if i.kind == "label" else "    " + i.text)
        return "\n".join(out) + "\n"

VALUK = ("valu","trans","perm","rfl")
def check(L, name=""):
    errs = 0
    n = len(L)
    for i, a in enumerate(L):
        if a.states == 0: continue
        dist = 0
        lastm = -1 if a.kind == "mfma" else None
        for k in range(i+1, min(n, i+40)):
            b = L[k]
            if b.states == 0: continue
            if b.kind == "mfma":
                if lastm is not None: dist = max(dist, lastm + 7)
                lastm = dist
            need = 0; why = ""
            if a.kind == "mfma":
                if b.kind in VALUK and (a.wr & (b.rd | b.wr)): need, why = 12, "mfmaD->valu"
                if b.kind in ("ds","vload","vstore","vdma") and (a.wr & (b.rd | b.wr)): need, why = 12, "mfmaD->mem"
                if b.kind == "mfma":
                    if a.wr & b.rd: need, why = 12, "mfmaD->AB"
                    elif (a.wr & b.cread) and a.wr != b.cread: need, why = 10, "mfmaD->C partial"
                if b.kind in VALUK and (a.cread & b.wr): need, why = max(need,7), why+"mfmaC WAR"
            if a.kind in VALUK:
                if b.kind == "mfma" and (a.wr & (b.rd | b.cread)): need, why = 2, "valu->mfma"
                if b.kind == "perm" and (a.wr & b.rd): need, why = 2, "valu->perm"
                if b.kind == "rfl" and (a.wr & b.rd): need, why = 1, "valu->rfl"
                if a.kind == "trans" and b.kind in ("valu","perm","rfl") and (a.wr & b.rd): need, why = max(need,1), "trans->valu"
                if a.sw and b.kind in ("vload","vstore","vdma") and (a.sw & b.sr): need, why = 5, "valu sgpr->vmem"
                if a.sw and b.kind in VALUK and (a.sw & b.sr): need, why = 2, "valu sgpr->valu"
            if a.kind == "vstore":
                if b.kind in VALUK and (a.cread & b.wr): need, why = 2, "store WAR"
                elif (a.cread & b.wr): need, why = 1, "store WAR"
            if a.kind == "salu" and "m0" in a.sw and b.kind == "vdma": need, why = 1, "m0->dma"
            if dist < need:
                print(f"HAZARD[{name}] {why}: need {need} have {dist}\n   {a.text}\n   {b.text}")
                errs += 1
            dist += b.states
            if dist >= 12: break
    return errs

def check16(L, name=""):
    errs = 0
    n = len(L)
    for i, a in enumerate(L):
        if a.states == 0: continue
        dist = 0
        for k in range(i+1, min(n, i+40)):
            b = L[k]
            if b.states == 0: continue
            need = 0; why = ""
            if a.kind == "mfma":
                if b.kind in VALUK and (a.wr & (b.rd | b.wr)): need, why = 8, "mfmaD->valu"
                if b.kind in ("ds","vload","vstore","vdma") and (a.wr & (b.rd | b.wr)): need, why = 8, "mfmaD->mem"
                if b.kind == "mfma":
                    if a.wr & b.rd: need, why = 8, "mfmaD->AB"
                    elif (a.wr & b.cread) and a.wr != b.cread: need, why = 6, "mfmaD->C partial"
                if b.kind in VALUK and (a.cread & b.wr): need, why = max(need,3), why+"mfmaC WAR"
            if a.kind in VALUK:
                if b.kind == "mfma" and (a.wr & (b.rd | b.cread)): need, why = 2, "valu->mfma"
                if b.kind == "perm" and (a.wr & b.rd): need, why = 2, "valu->perm"
                if b.kind == "rfl" and (a.wr & b.rd): need, why = 1, "valu->rfl"
                if a.kind == "trans" and b.kind in ("valu","perm","rfl") and (a.wr & b.rd): need, why = max(need,1), "trans->valu"
                if a.sw and b.kind in ("vload","vstore","vdma") and (a.sw & b.sr): need, why = 5, "valu sgpr->vmem"
                if a.sw and b.kind in VALUK and (a.sw & b.sr): need, why = 2, "valu sgpr->valu"
            if a.kind == "vstore":
                if b.kind in VALUK and (a.cread & b.wr): need, why = 2, "store WAR"
                elif (a.cread & b.wr): need, why = 1, "store WAR"
            if a.kind == "salu" and "m0" in a.sw and b.kind == "vdma": need, why = 1, "m0->dma"
            if dist < need:
                print(f"HAZARD[{name}] {why}: need {need} have {dist}\n   {a.text}\n   {b.text}")
                errs += 1
            dist += b.states
            if dist >= 12: break
    return errs
```

```python
import sys, struct, math, re
from asmlib import *
NAME = "standalone__gqa_softmax__near_ridge"
P = dict(stamp=0, la=8, wstep=2, g0=9, g1=110, ones=1, spl=1, order="Q0Q1Q2Q3P0Q4P1Q5P2Q6P3Q7P4P5T67", qa=97, qb=97,
         st="sc1", pa0=2, pb0=2, pa1=1, pb1=0, pld=3, limit=40, cpf=2, ldq="", ldkv="",
         units="K0|K1|K2K3|V0K4|V1K5|V2K6|V3K7|V4V5|V6V7", pre=2, ds="8,8,10,12,12,12,12,16,16", eps=6, fo=2, qmix=0, drop=0, st1=0, w0=8, noq1=0, wst=1,
         adel=0, ford=0, psw="", lin=0, ud=1, ef=0, pup=16, pm=2, pe=0, ps=1, sto=0, verb=0, fx=1, sw=1, sgr=6, smx=4)
outpath = f"cdna_kernels/{NAME}.s"
for a in sys.argv[1:]:
    if "=" in a:
        k, v = a.split("=")
        assert k in P, k
        P[k] = type(P[k])(v.replace("+", " "))
    else:
        outpath = a

LDS_K, LDS_V, LDS_ST, LDS_BYTES = 0, 65536, 131072, 163840
sQ, sK, sV, sO, sQn, sCp = 8, 12, 16, 20, 48, 52
sWave, sQoff, sKVoff, sT, sC, sLim, sOo, sOo2, sQoff1 = 24, 25, 26, 27, 28, 29, 30, 31, 44
sTile, sFl, sHook, sLo, sMsk, sVb = 45, 46, 47, 100, 101, 39
HOOKS = []
PSW = []
sSt = 58
sMask = 92
vLane, vQoff, vOst = 1, 2, 3
vKaddr, vVaddr, vRaddr, vWaddr = 4, 6, 7, 8
vR, vOne, vLs = 10, 12, 16
vTr, vVw, vLin = 16, 18, 19
vT, vL = 24, 25
vDk, vDv, vF = 26, 28, 29
vT2, vT3 = 30, 31
vFW, vFR = 30, 31
vFrag, vQ, vQn, vX, vO = 32, 64, 96, 128, 192

A = Asm()
NSB = 4
def sb(j): return 128 + 16*(j % NSB)
def oreg(db, qb): return vO + 16*(db//2) + 8*qb + 4*(db % 2)

SN1 = ["start", "karg", "iss", "bar", "x1", "x2", "end"]
SN2 = ["in", "s32", "s64", "s96", "s128", "tend"]
def stamp(name):
    if not P["stamp"]: return
    r = 60 + 2*SN1.index(name) if name in SN1 else 74 + 2*SN2.index(name)
    A.raw(f"{'s_memtime' if P['stamp']==1 else 's_memrealtime'} s[{r}:{r+1}]")
    if P["stamp"] == 3 and name in SN2:
        r = CY2[SN2.index(name)]
        A.raw(f"s_memtime s[{r}:{r+1}]")
CY2 = [86, 88, 90, 32, 34, 4]

def srd(d, lo, n):
    A.salu(f"s_mov_b32 s{d}, s{lo}"); A.salu(f"s_mov_b32 s{d+1}, s{lo+1}")
    A.salu(f"s_mov_b32 s{d+2}, {hex(n)}"); A.salu(f"s_mov_b32 s{d+3}, 0x00020000")

def qload(sr, soff, s, base=vQ):
    so = soff if s < 4 else {sQoff: sOo2, sOo: sOo2, sQoff1: sQ1b}[soff]
    A.vload(f"buffer_load_dwordx4 {vr(base+4*s,4)}, v{vQoff}, s[{sr}:{sr+3}], s{so} offen offset:{64*(s%4)} {P['ldq']}".rstrip(), wr=R(base+4*s,4), rd=[vQoff])

sQ1b = 59
def qlin(i, base=vQn):
    g, rho = i % 4, i // 4
    so = sQoff1 if g < 2 else sQ1b
    A.vload(f"buffer_load_dwordx4 {vr(base+4*i,4)}, v{vOst}, s[{sQ}:{sQ+3}], s{so} offen offset:{2048*(g%2)+128*rho} {P['ldq']}".rstrip(), wr=R(base+4*i,4), rd=[vOst])
def qtrans(w=1):
    for rho in range(2):
        for g in range(4): A.ds(f"ds_write_b128 v{vRaddr}, {vr(vQn+16*rho+4*g,4)} offset:{1024*g}", rd=[vRaddr]+R(vQn+16*rho+4*g,4))
        for e in range(2):
            for qb in range(2):
                d = vQ + 16*qb + 4*(2*rho+e)
                A.ds(f"ds_read_b128 {vr(d,4)}, v{vWaddr+e} offset:{2048*qb}", wr=R(d,4), rd=[vWaddr+e])
    if w: A.raw("s_waitcnt lgkmcnt(4)", kind="wait")

def V(t, wr, rd=(), **k): A.valu(t, wr=[wr] if isinstance(wr,int) else wr, rd=rd, **k)

def common_addrs():
    V(f"v_and_b32 v{vT2}, 15, v{vLane}", vT2, [vLane])
    V(f"v_lshrrev_b32 v{vT3}, 4, v{vLane}", vT3, [vLane])
    V(f"v_xor_b32 v{vT}, v{vT2}, v{vT3}", vT)
    V(f"v_lshlrev_b32 v{vT}, 4, v{vT}", vT)
    V(f"v_lshl_add_u32 v{vKaddr}, v{vT3}, 8, v{vT}", vKaddr)
    V(f"v_xor_b32 v{vKaddr+1}, 64, v{vKaddr}", vKaddr+1)
    V(f"v_lshlrev_b32 v{vL}, 4, v{vT2}", vL)
    V(f"v_lshl_add_u32 v{vL}, v{vT3}, 11, v{vL}", vL)
    V(f"v_add_u32 v{vVaddr}, {LDS_V}, v{vL}", vVaddr)
    V(f"v_lshlrev_b32 v{vOst}, {dict([(1,2),(2,3),(4,4)])[P['sw']]}, v{vT2}", vOst)
    V(f"v_lshl_add_u32 v{vOst}, v{vT3}, 10, v{vOst}", vOst)
    assert not P["lin"]
    A.salu(f"s_lshl_b32 s{sT}, s{sWave}, 12")
    A.salu(f"s_add_u32 s{sT}, s{sT}, {LDS_ST}")
    for i in range(4): V(f"v_mov_b32 v{vOne+i}, 0x3f803f80", vOne+i)
    V(f"v_and_b32 v{vT3}, 7, v{vLane}", vT3)
    A.salu(f"s_add_u32 s40, s{sWave}, {LDS_ST-4}")
    V(f"v_lshl_add_u32 v{vFW}, v{vT3}, 12, s40", vFW)
    V(f"v_mov_b32 v{vFR}, s{sT}", vFR)
    V(f"v_mov_b32 v{vF}, -1", vF)
    A.ds(f"ds_write_b32 v{vFR}, v{vF}", rd=[vFR, vF])
    c = math.log2(math.e) / math.sqrt(128.0)
    A.salu(f"s_mov_b32 s{sC}, {hex(struct.unpack('<I', struct.pack('<f', c))[0])}")
    A.salu(f"s_mov_b32 s{sLo}, {hex((127-P['limit'])<<23)}")
    A.salu(f"s_mov_b32 s{sLim}, {hex((2*P['limit'])<<23)}")
    A.salu(f"s_mov_b32 s{sMsk}, 0xffff0000")
    A.salu(f"s_mov_b32 s{sOo}, s{sQoff}")
    A.salu(f"s_mov_b32 s{sTile}, 0")
    A.salu(f"s_add_u32 s{sQ1b}, s{sQoff1}, 4096")
    A.salu(f"s_lshr_b32 s{sHook}, s{sWave}, 2")
    if P["psw"]: A.salu(f"s_mov_b32 s{sSt}, s{sHook}")
    A.salu(f"s_add_u32 s{sHook}, s{sHook}, 1")
    A.salu(f"s_mov_b32 s{sMask}, 0x01010101")
    for k in range(1, 8): A.salu(f"s_lshl_b32 s{sMask+k}, s{sMask}, {k}")

SEQ = []
for m in re.finditer(r"([QPT])(\d+)", P["order"]):
    k, d = m.group(1), m.group(2)
    if k == "Q": SEQ += [("Q", int(d), s) for s in range(8)]
    elif k == "P": SEQ += [("P", int(d), db) for db in range(8)]
    else: SEQ += [("P", int(c), 2*m_+x) for m_ in range(4) for c in d for x in range(2)]
assert len(SEQ) == 128 and len(set(SEQ)) == 128
qs = {j: SEQ.index(("Q", j, 0)) for j in range(8)}
qe = {j: SEQ.index(("Q", j, 7)) for j in range(8)}
pfirst = {j: min(SEQ.index(("P", j, t)) for t in range(8)) for j in range(8)}
plast = {j: max(SEQ.index(("P", j, t)) for t in range(8)) for j in range(8)}
tlast = {t: max(SEQ.index(("P", j, db)) for j in range(8) for db in (2*t, 2*t+1)) for t in range(4)}
UALL = [re.findall(r"[KVqn]\d", x) for x in P["units"].split("|")]
UNITS = [[c for c in u if c[0] in "KV"] for u in UALL]
assert len(UNITS) == 9 and sorted(sum(UNITS, [])) == sorted([f"{c}{j}" for c in "KV" for j in range(8)])
for u in UNITS:
    vs = [int(c[1]) % 4 for c in u if c[0] == "V"]
    assert len(set(vs)) == len(vs), u
def need(ch):
    j = int(ch[1])
    return qs[j] if ch[0] == "K" else pfirst[j]

rid = {}
def rdfrag(f):
    b = vFrag + 4*(f % 8)
    k, x, y = SEQ[f % 128]
    rid[f] = rdk(b, x, y) if k == "Q" else rdv(b, x, y)
def rdk(b, j, s_):
    ds, kb = s_ // 2, s_ % 2
    return A.ds(f"ds_read_b128 {vr(b,4)}, v{vKaddr+ds%2} offset:{8192*j+4096*kb+1024*ds}", wr=R(b,4), rd=[vKaddr+ds%2])
def rdv(b, j, db):
    return A.ds(f"ds_read_b128 {vr(b,4)}, v{vVaddr} offset:{8192*j+256*db}", wr=R(b,4), rd=[vVaddr])

FID = [None]
def flag_read(): FID[0] = A.ds(f"ds_read_b32 v{vF}, v{vFR}", wr=[vF], rd=[vFR])


class It:
    def __init__(s, kind, ok, emit, sc=None, urg=None):
        s.kind, s.ok, s.emit, s.sc, s.urg = kind, ok, emit, sc, urg or (lambda: False)
STAT = {}
CHK = []
def body(K):
    LA, W = P["la"], P["wstep"]
    for j in range(8 - NSB): assert qs[j+NSB] > plast[j]
    pos = {}
    done = {}
    cur = [0]
    def since(i): return sum(x.states for x in A.L[i+1:i+60])
    def after(key, n=0, d=done): return key in d and since(d[key]) >= n
    def mark(key): done[key] = len(A.L) - 1
    def reg(p, k): return sb(p // 8) + 2*(p % 8) + k
    S = {c: [] for c in "FRECXS"}
    ck = {}
    FL = []
    for k in range(8): ck[k] = min(need(ch) for ch in UNITS[k+1])
    for k in range(8):
        if any(ck[x] <= ck[k] for x in range(k+1, 8)): del ck[k]; continue
        c = ck[k] - LA
        assert c >= 0
        def e2(k=k):
            A.branch(f"s_cbranch_vccnz L_chk{k}"); A.label(f"L_back{k}"); mark(("chk", k)); CHK.append(k)
        FL.append((c, It("b", lambda c=c: (max(c - P["fo"], 0), 0) in pos, e2, urg=lambda c=c: (c, 0) in pos)))
    for i, g in enumerate(sorted(set([P["qa"], P["qb"]]))):
        if g < 0 or g >= 128: continue
        assert P["lin"] or g > qe[7]
        def h1(g=g):
            if P["qa"] == P["qb"]: A.salu(f"s_cmp_lg_u32 s{sHook}, 0")
            else: A.salu(f"s_cmp_eq_u32 s{sHook}, {1 if g == P['qa'] else 2}")
        def h2(i=i, g=g):
            A.branch(f"s_cbranch_scc1 L_q1_{i}"); A.label(f"L_q1b_{i}"); HOOKS.append((i, g))
        FL.append((g, It("s", lambda g=g: (g, 0) in pos, h1)))
        FL.append((g, It("b", lambda: True, h2)))
    S["F"] = [x[1] for x in sorted(FL, key=lambda z: z[0])]
    for f in range(LA, 128):
        S["R"].append(It("d", lambda f=f: (f-LA, 1) in pos and all(("chk", k) in done for k in ck if ck[k] <= f),
                         lambda f=f: rdfrag(f), urg=lambda f=f: (f-LA+P["ud"], 1) in pos))
    for p in range(64):
        j, qb, kb = p // 8, (p % 8)//4, (p % 4)//2
        for k in range(2):
            def ee(p=p, k=k):
                r = reg(p, k); A.trans(f"v_exp_f32 v{r}, v{r}", [r], [r]); mark(("e", p, k))
            S["E"].append(It("e", lambda j=j, qb=qb, kb=kb: after((SEQ.index(("Q", j, 6+kb)), qb), 8, pos), ee))
        def ce(p=p):
            a, b, d = reg(p, 0), reg(p, 1), sb(p // 8) + p % 8
            V(f"v_cvt_pk_bf16_f32 v{d}, v{a}, v{b}", d, [a, b]); mark(("c", p))
        S["C"].append(It("v", lambda p=p: after(("e", p, 1), 1), ce))
    ONE = [(j, qb) for j in range(8) for qb in range(2)]
    for q in range(8):
        def rc(q=q): A.trans(f"v_rcp_f32 v{vLs+q}, v{vLs+q}", [vLs+q], [vLs+q]); mark(("rcp", q))
        S["E"].append(It("e", lambda q=q: after(("o", 7, q//4), 8), rc))
    T_ = lambda: True
    assert max(plast[4], plast[5]) < min(tlast.values()) and NSB == 4
    for op, d in (("max", vT), ("min", vL)):
        r = vLs
        S["C"].append(It("v", lambda: after(("rcp", 2), 1), lambda op=op, d=d, r=r: V(f"v_{op}3_u32 v{d}, v{r}, v{r+1}, v{r+2}", d, R(r,3))))
    for op, d in (("max", vT), ("min", vL)):
        S["C"].append(It("v", lambda: after(("rcp", 4), 1), lambda op=op, d=d, r=r: V(f"v_{op}3_u32 v{d}, v{d}, v{r+3}, v{r+4}", d, [d, r+3, r+4])))
    for op, d in (("max", vT), ("min", vL)):
        S["C"].append(It("v", lambda: after(("rcp", 6), 1), lambda op=op, d=d, r=r: V(f"v_{op}3_u32 v{d}, v{d}, v{r+5}, v{r+6}", d, [d, r+5, r+6])))
    for op, d in (("max", vT), ("min", vL)):
        S["C"].append(It("v", lambda: after(("rcp", 7), 1), lambda op=op, d=d, r=r: V(f"v_{op}_u32 v{d}, v{d}, v{r+7}", d, [d, r+7])))
    S["C"].append(It("v", T_, lambda: V(f"v_subrev_u32 v{vT}, s{sLo}, v{vT}", vT, [vT])))
    S["C"].append(It("v", T_, lambda: V(f"v_subrev_u32 v{vL}, s{sLo}, v{vL}", vL, [vL])))
    S["C"].append(It("v", T_, lambda: V(f"v_max_u32 v{vT}, v{vT}, v{vL}", vT, [vT, vL])))
    def cmp_():
        assert not S["F"]
        V(f"v_cmp_le_u32 vcc, s{sLim}, v{vT}", [], [vT], sw=["vcc"]); mark("cmp")
    S["C"].append(It("v", T_, cmp_))
    SW = P["sw"]
    ST = []
    U = [(t, qb, i) for t in range(4) for qb in range(2) for i in range(4)]
    if SW == 4: U = [u for u in U if u[0] < 2] + sorted([u for u in U if u[0] >= 2], key=lambda u: (u[1], u[2], u[0]))
    if SW == 2: U = sorted(U, key=lambda u: (u[0]//2, u[1], u[2], u[0])) if 0 else [u for u in U if u[0] < 2] + sorted([u for u in U if u[0] >= 2], key=lambda u: (u[1], u[2], u[0]))
    for n_ in range(33):
        if n_ < 32:
            t, qb, i = U[n_]
            for h in range(2):
                db = 2*t + h
                lastn = max(SEQ.index(("P", j, db)) for j in range(8))
                okm = lambda qb=qb, i=i, lastn=lastn: after(("rcp", 4*qb+i), 1) and after((lastn, qb), 8, pos)
                S["X"].append(It("v", okm, lambda r=oreg(db, qb)+i, c=vLs+4*qb+i: V(f"v_mul_f32 v{r}, v{c}, v{r}", r, [r, c])))
        if n_ >= 1:
            t, qb, i = U[n_-1]
            def cv(t=t, qb=qb, i=i):
                a, b, d = oreg(2*t, qb)+i, oreg(2*t+1, qb)+i, 128+16*qb+4*i+t
                V(f"v_cvt_pk_bf16_f32 v{d}, v{a}, v{b}", d, [a, b]); mark(("oc", t, qb, i))
            S["X"].append(It("v", T_, cv))
            if t % SW == SW-1: ST.append((("oc", t, qb, i), lambda t=t, qb=qb, i=i: ostore(128+16*qb+4*i, t - SW + 1, qb, i)))
    if P["pup"] >= 0:
        S["S"].append(It("s", lambda: (P["pup"], 0) in pos, lambda: A.raw(f"s_setprio {P['pm']}")))
    if P["stamp"]:
        for n in (32, 64, 96): S["S"].append(It("s", lambda n=n: (n-1, 1) in pos, lambda n=n: stamp(f"s{n}")))
    seen = set()
    nxt = [(n, qb) for n in range(128) for qb in range(2)]
    waste = 0; log = []
    A.wait_lg(rid[W-1])
    one = None
    while nxt:
        if one:
            j, qb = one
            A.mfma16(vLs+4*qb, sb(j)+4*qb, vOne, None if j == 0 else vLs+4*qb); mark(("o", j, qb))
            if j < 8 - NSB: assert (qs[j+NSB], 0) not in pos
        else:
            n, qb = nxt.pop(0)
            b = vFrag + 4*(n % 8)
            k, x, y = SEQ[n]
            if k == "Q":
                d = sb(x) + 8*qb + 4*(y % 2)
                A.mfma16(d, b, vQ + 16*qb + 4*(y//2), None if y < 2 else d)
            else:
                assert after(("c", 8*x+4*qb+3), 2), ("P late", n)
                d = oreg(y, qb)
                A.mfma16(d, sb(x) + 4*qb, b, d if (y, qb) in seen else None)
                seen.add((y, qb))
            pos[(n, qb)] = len(A.L) - 1; cur[0] = n
        if not nxt: break
        one = None
        if ONE and after(("c", 8*ONE[0][0]+4*ONE[0][1]+3), 2): one = ONE.pop(0)
        scal = True
        if not one and nxt[0][1] == 0 and nxt[0][0] % W == 0:
            f = min(nxt[0][0] + W - 1, 127)
            assert f in rid and rid[f] >= base_lg[0], ("read late", f)
            l = len(A.L); A.wait_lg(rid[f]); scal = len(A.L) == l
        if scal and S["S"] and S["S"][0].ok(): S["S"].pop(0).emit(); scal = False
        def hd(c, i=0): return S[c][i] if len(S[c]) > i and S[c][i].kind != "post" and S[c][i].ok() and (scal or not S[c][i].sc) else None
        g = ""
        fh = hd("F") if scal else None
        def cands():
            cand = []
            for c in "RCX":
                h = hd(c)
                if h:
                    cand.append((c, h))
                    h2 = hd(c, 1)
                    if h2 and not (h.kind == "v" and h2.kind == "d"): cand.append((c + "2", h2))
            cand.sort(key=lambda z: (len(z[0]), "RCX".index(z[0][0])))
            return cand
        cand = cands()
        urgent = any(h.urg() for c, h in cand)
        useE = hd("E") and not urgent and (len(cand) < 2 or (P["ef"] and not any(c[0] == "C" for c, h in cand)))
        if fh and (fh.kind == "s" or useE or not cand or fh.urg()):
            S["F"].pop(0).emit(); g = fh.kind.upper()
            if fh.kind == "b" and hd("E"): useE = True
        if useE:
            S["E"].pop(0).emit(); g += "e"
        else:
            pick = cand[:2]
            pick.sort(key=lambda z: (z[1].kind != "d", len(z[0])))
            for c, h in pick:
                assert S[c[0]][0] is h
                S[c[0]].pop(0).emit(); g += c[0].lower()
            waste += 2 - len(pick)
        log.append(g + ("|" if not one and nxt[0][1] == 0 else "," if not one else "o"))
    stamp("s128")
    A.raw(f"s_setprio {P['pe']}")
    assert not ONE and not any(S[c] for c in "FRECS"), {c: len(S[c]) for c in S}
    STAT[K] = (waste, len(S["X"]), "".join(log))
    if max(P["qa"], P["qb"]) >= 128:
        if P["qa"] == P["qb"]: A.salu(f"s_cmp_eq_u32 s{sHook}, 0")
        else: A.salu(f"s_cmp_lg_u32 s{sHook}, {1 if P['qa'] >= 128 else 2}")
        A.branch("s_cbranch_scc1 L_nq")
        for s_ in range(8):
            if P["lin"]: qlin(s_)
            else: qload(sQ, sQoff1, s_)
        A.label("L_nq")
        for x in A.L[-9:-1]: x.states = 0
    first = [1]
    def stores(lag, mx):
        while ST and mx > 0 and after(ST[0][0], lag):
            if first[0]:
                assert after("cmp", 5)
                A.branch("s_cbranch_vccnz L_fb")
                if P["wst"] == 1: A.wait_vm(0)
                first[0] = 0
            ST.pop(0)[1](); mx -= 1
    for ii, it in enumerate(S["X"]):
        for _ in range(10):
            if it.ok(): break
            A.nop(0)
        assert it.ok()
        it.emit()
        if ii >= P["sto"] and ii % P["sgr"] == P["sgr"]-1: stores(2, P["smx"])
    stores(0, 99)
    for x in A.L:
        if x.kind == "vload": x.states = 1

def ostore(base, t, qb, i, st=True):
    SW = P["sw"]
    d = base + t
    A.vstore(f"buffer_store_dword{'' if SW == 1 else f'x{SW}'} {vr(d,SW)}, v{vOst}, s[{sO}:{sO+3}], s{sOo2 if qb else sOo} offen offset:{256*i+64*t} {P['st'] if st else ''}".rstrip(), R(d,SW), rd=[vOst])

base_lg = [0]
def first_reads():
    A.lgdone = A.lg
    base_lg[0] = A.lg
    for f in range(P["la"]): rdfrag(f)

def slow_paths():
    for i, g in HOOKS:
        A.label(f"L_q1_{i}")
        for s in range(8):
            if P["lin"]: qlin(s)
            elif not P["noq1"]: qload(sQ, sQoff1, s, vQ if g > qe[7] else vQn)
        A.branch(f"s_branch L_q1b_{i}")
    for i, pr_ in PSW:
        A.label(f"L_ps_{i}")
        A.raw(f"s_setprio {pr_}")
        A.branch(f"s_branch L_psb_{i}")
    for k in CHK:
        A.label(f"L_chk{k}")
        A.salu(f"s_and_b32 s{sT}, s{sFl}, s{sMask+k}")
        A.branch(f"s_cbranch_scc0 L_back{k}")
        A.label(f"L_slow{k}")
        flag_read()
        A.wait_lg_all()
        A.rfl(sFl, vF)
        A.salu(f"s_and_b32 s{sT}, s{sFl}, s{sMask+k}")
        A.branch(f"s_cbranch_scc1 L_slow{k}")
        A.branch(f"s_branch L_back{k}")

def fallback():
    vS = 128; vOf = 192
    M, M2 = vLs, vLs+2
    A.wait_vm(0)
    for s in range(8): qload(sQ, sOo, s)
    A.wait_lg_all()
    A.nop(15)
    rr = {}
    def rk(n): rr[n] = rdk(vFrag + 4*(n % 8), n//8, n % 8)
    for n in range(7): rk(n)
    A.wait_vm(0)
    for n in range(64):
        j, y = divmod(n, 8)
        A.wait_lg(rr[n])
        for qb in range(2):
            d = vS + 16*j + 8*qb + 4*(y % 2)
            A.mfma16(d, vFrag+4*(n%8), vQ+16*qb+4*(y//2), None if y < 2 else d)
        if n + 7 < 64: rk(n+7)
    A.nop(12)
    for s in range(8): qload(sQn, sQoff1, s)
    for p in range(64):
        a, b, m = vS+2*p, vS+2*p+1, M + (p % 8)//4
        if p in (0, 4): V(f"v_max_f32 v{m}, v{a}, v{b}", m, [a, b])
        else: V(f"v_max3_f32 v{m}, v{m}, v{a}, v{b}", m, [m, a, b])
    for op in ("v_permlane32_swap_b32", "v_permlane16_swap_b32"):
        for q in range(2): V(f"v_mov_b32 v{M2+q}, v{M+q}", M2+q, [M+q])
        A.nop(1)
        for q in range(2): A.perm(M+q, M2+q, op)
        for q in range(2): V(f"v_max_f32 v{M+q}, v{M+q}, v{M2+q}", M+q, [M+q, M2+q])
    for p in range(64):
        a, b, m = vS+2*p, vS+2*p+1, M + (p % 8)//4
        V(f"v_sub_f32 v{a}, v{a}, v{m}", a, [a, m])
        V(f"v_sub_f32 v{b}, v{b}, v{m}", b, [b, m])
        A.trans(f"v_exp_f32 v{a}, v{a}", [a], [a])
        A.trans(f"v_exp_f32 v{b}, v{b}", [b], [b])
        A.nop(0)
        V(f"v_cvt_pk_bf16_f32 v{vS+p}, v{a}, v{b}", vS+p, [a, b])
    A.nop(1)
    for j in range(8):
        for qb in range(2): A.mfma16(vLs+4*qb, vS+8*j+4*qb, vOne, None if j == 0 else vLs+4*qb)
    rr = {}
    def rv(n): rr[n] = rdv(vFrag + 4*(n % 8), n//8, n % 8)
    for n in range(7): rv(n)
    for n in range(64):
        j, db = divmod(n, 8)
        A.wait_lg(rr[n])
        for qb in range(2): A.mfma16(oreg(db, qb), vS+8*j+4*qb, vFrag+4*(n%8), None if j == 0 else oreg(db, qb))
        if n + 7 < 64: rv(n+7)
    A.nop(12)
    for q in range(8): A.trans(f"v_rcp_f32 v{vLs+q}, v{vLs+q}", [vLs+q], [vLs+q])
    A.nop(0)
    for qb in range(2):
        for i in range(4):
            c = vLs+4*qb+i
            for db in range(8):
                r = oreg(db, qb)+i
                V(f"v_mul_f32 v{r}, v{c}, v{r}", r, [r, c])
            for t in range(4):
                a, b, d = oreg(2*t, qb)+i, oreg(2*t+1, qb)+i, 128+16*qb+4*i+t
                V(f"v_cvt_pk_bf16_f32 v{d}, v{a}, v{b}", d, [a, b])
            for t in range(0, 4, P["sw"]): ostore(128+16*qb+4*i, t, qb, i, False)
    A.wait_vm(0)
    A.wait_lg_all()
    A.nop(2)

def stamp_dump():
    if not P["stamp"]: return
    A.wait_vm(0)
    stamp("end")
    A.raw("s_memrealtime s[58:59]")
    A.raw("s_load_dwordx2 s[46:47], s[0:1], 40")
    A.raw("s_waitcnt lgkmcnt(0)")
    A.raw("s_mov_b32 s48, s46"); A.raw("s_mov_b32 s49, s47"); A.raw("s_mov_b32 s50, 0x1000000"); A.raw("s_mov_b32 s51, 0x00020000")
    A.raw(f"s_lshl_b32 s52, s2, 3"); A.raw(f"s_add_u32 s52, s52, s{sWave}"); A.raw("s_lshl_b32 s52, s52, 7")
    A.raw("s_getreg_b32 s53, hwreg(HW_REG_XCC_ID)")
    A.raw("s_getreg_b32 s54, hwreg(HW_REG_HW_ID)")
    vals = [56, 58, 53, 54] + [60+2*i for i in range(6)] + [86+i for i in range(6)] + [74+2*i for i in range(6)] + [72]
    if P["stamp"] == 3:
        for i in range(12): A.raw(f"v_readlane_b32 s{8+i}, v0, {i}")
        vals = [53] + [60+2*i for i in range(6)] + [8+i for i in range(6)] + [74+2*i for i in range(6)] + [72] + [14+i for i in range(6)] + CY2
    A.raw("v_mov_b32 v3, 0")
    for n, sreg in enumerate(vals):
        A.raw(f"v_mov_b32 v16, s{sreg}")
        A.raw(f"buffer_store_dword v16, v3, s[48:51], s52 offen offset:{4*n}")
    A.raw("s_waitcnt vmcnt(0)")

def dropset(t):
    if not P["drop"]: return
    da, db = (P["drop"] >> (2*t)) & 1, (P["drop"] >> (2*t+1)) & 1
    A.salu(f"s_cmp_ge_u32 s{sWave}, 4")
    A.salu(f"s_mov_b32 s36, {0 if db else 0x2000000}")
    A.salu(f"s_cselect_b32 s{sO+2}, s36, {0 if da else hex(0x2000000)}")
def chunk(ch):
    j = int(ch[1])
    if ch[0] == "K":
        A.salu(f"s_add_u32 s43, s42, {j*8192}")
        for i in range(2):
            d = vO + 8*j + 4*i
            A.vload(f"buffer_load_dwordx4 {vr(d,4)}, v{vLin}, s[{sK}:{sK+3}], s43 offen offset:{1024*i} {P['ldkv']}".rstrip(), wr=R(d,4), rd=[vLin])
    else:
        A.m0(f"s_add_u32 m0, s41, {LDS_V + j*8192}")
        for i in range(2):
            A.salu(f"s_add_u32 s43, s{sVb}, {j*8192+3072*i}")
            A.vload(f"buffer_load_dwordx4 v{vDv}, s[{sV}:{sV+3}], s43 offen offset:{1024*i} {P['ldkv']} lds", rd=[vDv], lds=True)
def kscale(j):
    T = 160
    for i in range(2):
        d = vO + 8*j + 4*i
        for r in range(4):
            V(f"v_lshlrev_b32 v{T+2*r}, 16, v{d+r}", T+2*r, [d+r])
            V(f"v_and_b32 v{T+2*r+1}, s{sMsk}, v{d+r}", T+2*r+1, [d+r])
        for r in range(8): V(f"v_mul_f32 v{T+r}, s{sC}, v{T+r}", T+r, [T+r])
        for r in range(4): V(f"v_cvt_pk_bf16_f32 v{d+r}, v{T+2*r}, v{T+2*r+1}", d+r, [T+2*r, T+2*r+1])
        A.ds(f"ds_write_b128 v{vDk+i}, {vr(d,4)} offset:{8192*j}", rd=[vDk+i]+R(d,4))
def vtr(j):
    T = 128 + 8*(j % 4)
    for y in range(2):
        for x in range(2):
            last = A.ds(f"ds_read_b64_tr_b16 {vr(T+4*y+2*x,2)}, v{vTr+y} offset:{8192*j+1024*x}", wr=R(T+4*y+2*x,2), rd=[vTr+y])
    return last
def vwr(j):
    T = 128 + 8*(j % 4)
    for y in range(2):
        A.ds(f"ds_write_b128 v{vVw}, {vr(T+4*y,4)} offset:{8192*j+(128 if P['sw'] == 4 else 1024)*y}", rd=[vVw]+R(T+4*y,4))
def b_addrs():
    V(f"v_lshrrev_b32 v{vT}, 4, v{vLane}", vT)
    V(f"v_and_b32 v{vL}, 15, v{vLane}", vL)
    A.salu(f"s_and_b32 s40, s{sWave}, 1")
    A.salu(f"s_lshl_b32 s40, s40, 7")
    A.salu(f"s_and_b32 s43, s41, 4096")
    A.salu(f"s_add_u32 s40, s40, s43")
    V(f"v_and_b32 v{vDk}, 7, v{vL}", vDk)
    V(f"v_xor_b32 v{vDk}, v{vT}, v{vDk}", vDk)
    V(f"v_lshlrev_b32 v{vDk}, 4, v{vDk}", vDk)
    V(f"v_lshl_add_u32 v{vDk}, v{vL}, 8, v{vDk}", vDk)
    V(f"v_add_u32 v{vDk}, s40, v{vDk}", vDk)
    V(f"v_xor_b32 v{vDk+1}, 64, v{vDk}", vDk+1)
    V(f"v_lshlrev_b32 v{vDv}, 2, v{vT}", vDv)
    V(f"v_xor_b32 v{vDv}, v{vDv}, v{vL}", vDv)
    V(f"v_lshlrev_b32 v{vDv}, 4, v{vDv}", vDv)
    V(f"v_lshl_add_u32 v{vDv}, v{vT}, 8, v{vDv}", vDv)
    A.salu(f"s_lshr_b32 s40, s41, 1")
    A.salu(f"s_add_u32 s{sVb}, s{sKVoff}, s40")
    A.salu(f"s_add_u32 s40, s41, {LDS_V}")
    FLD = {4: [(0,2,8),(4,1,10),(2,2,4),(5,1,6)], 2: [(0,2,8),(5,1,7),(2,2,5),(4,1,4)], 1: [(0,1,8),(5,1,9),(2,2,6),(4,1,5),(1,1,4)]}[P["sw"]]
    V(f"v_mov_b32 v{vVw}, s40", vVw)
    for a_, w_, d_ in FLD:
        V(f"v_bfe_u32 v{vTr}, v{vLane}, {a_}, {w_}", vTr)
        V(f"v_lshl_add_u32 v{vVw}, v{vTr}, {d_}, v{vVw}", vVw)
    V(f"v_lshrrev_b32 v{vTr}, 3, v{vLane}", vTr)
    V(f"v_and_b32 v{vTr}, 4, v{vTr}", vTr)
    V(f"v_xor_b32 v{vTr}, v{vTr}, v{vL}", vTr)
    V(f"v_lshlrev_b32 v{vTr}, 4, v{vTr}", vTr)
    V(f"v_and_b32 v{vL}, 12, v{vLane}", vL)
    V(f"v_lshl_add_u32 v{vTr}, v{vL}, 6, v{vTr}", vTr)
    V(f"v_and_b32 v{vT}, 1, v{vT}", vT)
    V(f"v_lshl_add_u32 v{vTr}, v{vT}, 3, v{vTr}", vTr)
    V(f"v_add_u32 v{vTr}, s40, v{vTr}", vTr)
    V(f"v_xor_b32 v{vTr+1}, 128, v{vTr}", vTr+1)

def main():
    if P["stamp"]:
        A.raw("s_memrealtime s[56:57]")
        stamp("start")
    A.salu("s_cmp_ge_u32 s2, 256")
    A.branch("s_cbranch_scc1 L_end")
    A.raw("s_load_dwordx4 s[4:7], s[0:1], 0")
    A.raw("s_load_dwordx4 s[32:35], s[0:1], 16")
    V(f"v_lshrrev_b32 v{vT}, 6, v0", vT)
    V(f"v_and_b32 v{vLane}, 63, v0", vLane)
    A.rfl(sWave, vT)
    if P["cpf"] == 2:
        A.raw(f"s_getpc_b64 s[{sCp}:{sCp+1}]")
        A.label("L_pc")
        V(f"v_lshlrev_b32 v{vX}, 6, v0", vX)
        V(f"v_min_u32 v{vX}, L_hot_end-L_pc-4, v{vX}", vX)
        V(f"v_mov_b32 v{vX+1}, s{sCp+1}", vX+1)
        V(f"v_add_co_u32 v{vX}, vcc, s{sCp}, v{vX}", vX)
        V(f"v_addc_co_u32 v{vX+1}, vcc, 0, v{vX+1}, vcc", vX+1)
        A.vload(f"global_load_dword v{vX+2}, v[{vX}:{vX+1}], off", wr=[vX+2], rd=[vX, vX+1])
    elif P["cpf"]:
        A.raw(f"s_getpc_b64 s[{sCp}:{sCp+1}]")
        A.label("L_pc")
        A.salu(f"s_mov_b32 s{sCp+2}, L_hot_end-L_pc")
        A.salu(f"s_mov_b32 s{sCp+3}, 0x00020000")
        V(f"v_lshlrev_b32 v{vX}, 6, v0", vX)
        A.vload(f"buffer_load_dword v{vX+1}, v{vX}, s[{sCp}:{sCp+3}], 0 offen", wr=[vX+1], rd=[vX])
    A.salu("s_and_b32 s36, s2, 7"); A.salu("s_lshl_b32 s36, s36, 4"); A.salu("s_lshr_b32 s37, s2, 4"); A.salu("s_add_u32 s36, s36, s37")
    A.salu("s_bfe_u32 s37, s2, 0x10003")
    A.salu(f"s_lshl_b32 s{sKVoff}, s36, 16")
    A.salu("s_lshl_b32 s38, s36, 18")
    A.salu("s_lshl_b32 s37, s37, 17")
    A.salu("s_add_u32 s38, s38, s37")
    A.salu(f"s_lshl_b32 s39, s{sWave}, 13")
    A.salu(f"s_add_u32 s{sQoff}, s38, s39")
    A.salu(f"s_add_u32 s{sQoff1}, s{sQoff}, 65536")
    A.salu(f"s_add_u32 s{sOo2}, s{sQoff}, 4096")
    V(f"v_and_b32 v{vT2}, 15, v{vLane}", vT2)
    V(f"v_lshrrev_b32 v{vT3}, 4, v{vLane}", vT3)
    V(f"v_lshlrev_b32 v{vQoff}, 8, v{vT2}", vQoff)
    V(f"v_lshl_add_u32 v{vQoff}, v{vT3}, 4, v{vQoff}", vQoff)
    V(f"v_lshlrev_b32 v{vLin}, 4, v{vLane}", vLin)
    A.salu(f"s_and_b32 s41, s{sWave}, 3")
    A.salu(f"s_lshl_b32 s41, s41, 11")
    A.salu(f"s_add_u32 s42, s{sKVoff}, s41")
    A.salu(f"s_cmp_ge_u32 s{sWave}, 4")
    A.branch("s_cbranch_scc1 L_b")
    A.raw("s_waitcnt lgkmcnt(0)")
    stamp("karg")
    srd(sQ, 4, 0x2000000)
    srd(sK, 6, 0x800000)
    if P["adel"]: A.barrier()
    for s in range(8): qload(sQ, sQoff, s)
    A.branch("s_branch L_common")
    A.label("L_b")
    A.raw("s_waitcnt lgkmcnt(0)")
    stamp("karg")
    srd(sK, 6, 0x800000)
    items = []
    uend = []
    nq = 0
    nn = 0
    for k, u in enumerate(UALL):
        for ch in u:
            if ch[0] in "KV": items.append(("c", ch, 2)); ue = len(items)
            elif ch[0] == "q":
                for _ in range(int(ch[1])): items.append(("q", nq, 1)); nq += 1
            else:
                assert P["qb"] < 0
                for _ in range(int(ch[1])): items.append(("n", nn, 1)); nn += 1
        uend.append(ue)
    while nq < 8: items.append(("q", nq, 1)); nq += 1
    if P["qb"] < 0:
        while nn < 8: items.append(("n", nn, 1)); nn += 1
    if P["noq1"]: items = [x for x in items if x[0] != "n"]
    assert nq == 8 and nn in (0, 8)
    lastq = max(i for i, x in enumerate(items) if x[0] != "n")
    nqn = len(items) - 1 - lastq
    assert nqn == 0
    pos = [0]
    cnt = lambda a, b: sum(x[2] for x in items[a:b])
    def issue():
        k, x, _ = items[pos[0]]
        if k == "c": chunk(x)
        elif k == "q": qload(sQ, sQoff, x)
        elif P["lin"]: qlin(x)
        else: qload(sQ, sQoff1, x, vQn)
        pos[0] += 1
    for i in range(P["pre"]):
        assert items[pos[0]][1][0] == "K"
        issue()
        if P["adel"] == i+1: A.barrier()
    srd(sQ, 4, 0x2000000)
    A.label("L_common")
    srd(sV, 32, 0x800000); srd(sO, 34, 0x2000000); srd(sQn, 4, 0x2000000)
    common_addrs()
    A.salu(f"s_cmp_ge_u32 s{sWave}, 4")
    A.branch("s_cbranch_scc1 L_b2")
    if P["pa0"]: A.raw(f"s_setprio {P['pa0']}")
    A.wait_lg_all()
    stamp("iss")
    A.barrier()
    stamp("bar")
    A.branch("s_branch L_enter")
    A.label("L_b2")
    if P["pld"]: A.raw(f"s_setprio {P['pld']}")
    b_addrs()
    DS = [int(x) for x in P["ds"].split(",")] + [99]
    def fillq(k):
        start = uend[k-1] if k else 0
        while pos[0] < len(items) and ((k < 9 and pos[0] < uend[k]) or cnt(start, pos[0]+1) <= DS[k]): issue()
    fillq(0)
    stamp("iss")
    for k in range(9):
        A.wait_vm(cnt(uend[k], pos[0]))
        lastr = None
        for ch in UNITS[k]:
            if ch[0] == "V": lastr = vtr(int(ch[1]))
        if 0 < k <= P['ford']: fillq(k+1)
        for ch in UNITS[k]:
            if ch[0] == "K": kscale(int(ch[1]))
        if lastr is not None: A.wait_lg(lastr)
        for ch in UNITS[k]:
            if ch[0] == "V": vwr(int(ch[1]))
        if k == 0:
            A.wait_lg_all()
            A.barrier(); stamp("bar")
            fillq(1)
        else:
            V(f"v_mov_b32 v{vF}, {hex((0xff << k) & 0xff)}", vF)
            A.ds(f"ds_write_b8 v{vFW}, v{vF}", rd=[vFW, vF])
            if k == 4: stamp("x1")
            if k == 8: stamp("x2")
            if k > P['ford']: fillq(k+1)
    assert pos[0] == len(items)
    A.raw(f"s_setprio {P['ps']}")
    A.wait_vm(nqn)
    A.label("L_bw")
    flag_read()
    A.wait_lg_all()
    A.rfl(sFl, vF)
    A.salu(f"s_cmp_lg_u32 s{sFl}, 0")
    A.branch("s_cbranch_scc1 L_bw")
    A.salu("s_mov_b64 vcc, 0")
    A.branch("s_branch L_ent2")
    A.label("L_enter")
    A.salu("s_mov_b64 vcc, 1")
    A.salu(f"s_mov_b32 s{sFl}, -1")
    A.label("L_ent2")
    first_reads()
    A.wait_vm(nqn)
    A.label("L_body")
    stamp("in")
    body("B")
    A.label("L_tend")
    stamp("tend")
    A.salu(f"s_cmp_eq_u32 s{sTile}, 1")
    A.branch("s_cbranch_scc1 L_done")
    A.salu(f"s_mov_b32 s{sTile}, 1")
    A.salu(f"s_mov_b32 s{sQn+2}, 0")
    A.salu(f"s_mov_b32 s{sOo}, s{sQoff1}")
    A.salu(f"s_add_u32 s{sOo2}, s{sQoff1}, 4096")
    if P["stamp"]:
        A.raw("s_waitcnt lgkmcnt(0)")
        for i in range(6):
            if P["stamp"] == 3:
                A.raw(f"v_writelane_b32 v0, s{74+2*i}, {i}"); A.raw(f"v_writelane_b32 v0, s{CY2[i]}, {6+i}")
            else: A.raw(f"s_mov_b32 s{86+i}, s{74+2*i}")
    if P["lin"]:
        A.wait_vm(8 if P["wst"] else 0); qtrans(0)
    first_reads()
    if P["wst"] != 1: A.wait_vm(32//P["sw"] if P["wst"] else 0)
    A.salu("s_mov_b64 vcc, 0")
    A.salu(f"s_mov_b32 s{sHook}, 0")
    A.raw(f"s_setprio {P['ps']}")
    A.branch("s_branch L_body")
    slow_paths()
    A.label("L_done")
    stamp_dump()
    A.label("L_end")
    A.raw("s_endpgm")
    A.label("L_hot_end")
    A.label("L_fb")
    fallback()
    A.branch("s_branch L_tend")
    errs = check16(A.L, "v6")
    hdr = f"""; Kernarg layout for this problem (48 bytes, ptrs only, base s[0:1]):
; @launch grid=(256,1,1) block=(512,1,1) lds={LDS_BYTES}
.amdgcn_target "amdgcn-amd-amdhsa--gfx950"
.text
.globl {NAME}_kernel
.p2align 8
.type {NAME}_kernel,@function
{NAME}_kernel:
"""
    ftr = f"""
.section .rodata,"a"
.p2align 6
.amdhsa_kernel {NAME}_kernel
  .amdhsa_next_free_vgpr 256
  .amdhsa_next_free_sgpr 102
  .amdhsa_accum_offset 256
  .amdhsa_group_segment_fixed_size 0
  .amdhsa_kernarg_size 48
  .amdhsa_user_sgpr_count 2
  .amdhsa_user_sgpr_kernarg_segment_ptr 1
  .amdhsa_system_sgpr_workgroup_id_x 1
.end_amdhsa_kernel
"""
    open(outpath, "w").write(hdr + A.text() + ftr)
    for k_, v_ in STAT.items(): print("softmax", k_, "waste", v_[0], "post items", v_[1], v_[2] if P["verb"] else "")
    print("wrote", outpath, len(A.L), "lines; hazards:", errs)
main()
```
